```python
import torch

def _softmax(x, axis=-1):
    return torch.softmax(x, dim=axis)

def _gelu(x):
    return torch.nn.functional.gelu(x, approximate='tanh')

def _silu(x):
    return torch.nn.functional.silu(x)

def _sigmoid(x):
    return torch.sigmoid(x)

def _layernorm(x, axis=-1, eps=1e-05):
    m = x.mean(dim=axis, keepdim=True)
    v = x.var(dim=axis, keepdim=True, unbiased=False)
    return (x - m) / torch.sqrt(v + eps)

def _scatter_add(tgt, idx, src, axis=0):
    return tgt.clone().index_add_(axis, idx, src)

def _segment_sum(src, seg, n):
    out = torch.zeros((n,) + src.shape[1:], dtype=src.dtype)
    return out.index_add_(0, seg, src)

def _pad(x, pw):
    flat = tuple((v for pair in reversed(pw) for v in pair))
    return torch.nn.functional.pad(x, flat)
kernel_name = 'standalone__neighborhood_dinat__vision'

def setup_inputs():

    _w = lambda a: (lambda t: t.to(torch.bfloat16) if t.is_floating_point() else t)(torch.as_tensor(a))
    ks, dil, nh = (7, 2, 4)
    H = W = max(ks * dil, 224 // dil * dil)
    C = max(nh, 192 // nh * nh)
    return {'x': _w((lambda *s: torch.randn(*s, dtype=torch.bfloat16) * 0.2)(1, H, W, C)), 'wqkv': _w((lambda *s: torch.randn(*s, dtype=torch.bfloat16) * 0.2)(C, 3 * C)), 'wo': _w((lambda *s: torch.randn(*s, dtype=torch.bfloat16) * 0.4)(C, C)), 'rpb': _w((lambda *s: torch.randn(*s, dtype=torch.bfloat16) * 0.4)(nh, 2 * ks - 1, 2 * ks - 1))}

def reference(x, wqkv, wo, rpb):
    B, H, W, C = x.shape
    ks, dil, nh = (7, 2, 4)
    hd = C // nh
    scale = hd ** (-0.5)
    qkv = (x @ wqkv).reshape(B, H, W, 3, nh, hd)
    q = qkv[:, :, :, 0].clone()
    k = qkv[:, :, :, 1].clone()
    v = qkv[:, :, :, 2].clone()
    ih = torch.arange(H)
    iw = torch.arange(W)
    m = torch.arange(ks)
    sh = torch.clip(ih // dil - ks // 2, 0, H // dil - ks)
    sw = torch.clip(iw // dil - ks // 2, 0, W // dil - ks)
    kh = (sh[:, None] + m[None, :]) * dil + (ih % dil)[:, None]
    kw = (sw[:, None] + m[None, :]) * dil + (iw % dil)[:, None]
    rh = sh[:, None] + m[None, :] - (ih // dil)[:, None] + (ks - 1)
    rw = sw[:, None] + m[None, :] - (iw // dil)[:, None] + (ks - 1)
    ih4 = kh[:, :, None, None].clone()
    iw4 = kw[None, None, :, :].clone()
    kg = (lambda x, *d: x.permute(*d))(k[:, ih4, iw4, :, :], 0, 1, 3, 5, 2, 4, 6).reshape(B, H, W, nh, ks * ks, hd)
    vg = (lambda x, *d: x.permute(*d))(v[:, ih4, iw4, :, :], 0, 1, 3, 5, 2, 4, 6).reshape(B, H, W, nh, ks * ks, hd)
    bg = (lambda x, *d: x.permute(*d))(rpb[:, rh[:, :, None, None], rw[None, None, :, :]], 1, 3, 0, 2, 4).reshape(1, H, W, nh, ks * ks)
    logits = torch.einsum('bhwnd,bhwnkd->bhwnk', q, kg) * scale + bg
    attn = _softmax(logits, axis=-1)
    out = torch.einsum('bhwnk,bhwnkd->bhwnd', attn, vg).reshape(B, H, W, C)
    return out @ wo
```

```python
import heapq


def R(a, n=1):
    p = "v"
    if a >= 256:
        p = "a"
        a -= 256
    return f"{p}{a}" if n == 1 else f"{p}[{a}:{a + n - 1}]"


def SR(a, n=1):
    return f"s{a}" if n == 1 else f"s[{a}:{a + n - 1}]"


def rng(a, n):
    return set(range(a, a + n))


def C(v):
    return ("c", v)


VALU_KINDS = ("valu", "trans", "perm", "rfl")
LDS_KINDS = ("dsr", "dsw")
VM_KINDS = ("vld", "vst", "dma")
MEM_KINDS = LDS_KINDS + VM_KINDS
SCALAR_KINDS = ("salu", "bar")

LAT_LDS = 128


class I:
    __slots__ = ("text", "kind", "rd", "wr", "deps", "waits", "pri", "slots", "idx", "srcc", "dst", "shape",
                 "stdata", "succ", "npred", "rtime", "rstate", "t", "pos", "vlat", "done", "tag", "nb", "drain")

    def __init__(self, text, kind, rd=(), wr=(), slots=1):
        self.text = text
        self.kind = kind
        self.rd = set(rd)
        self.wr = set(wr)
        self.deps = []
        self.waits = []
        self.slots = slots
        self.srcc = None
        self.dst = None
        self.shape = None
        self.stdata = set()
        self.vlat = 0
        self.done = None
        self.tag = ""
        self.nb = 0
        self.drain = False


def hazard(p, c):
    req = 0
    k = c.kind
    if p.kind in VALU_KINDS:
        vw = {r for r in p.wr if isinstance(r, int)}
        sw = p.wr - vw
        if vw & c.rd:
            if k in ("mfma", "perm"):
                req = max(req, 2)
            if k == "rfl":
                req = max(req, 1)
            if p.kind == "trans" and k in VALU_KINDS and k != "trans":
                req = max(req, 1)
            if p.kind == "trans" and k in MEM_KINDS:
                req = max(req, 1)
        if sw & c.rd:
            if k in VALU_KINDS or k == "salu":
                req = max(req, 2)
            if k in MEM_KINDS:
                req = max(req, 5)
    if p.kind == "mfma":
        if k == "mfma":
            cs = rng(*c.srcc) if c.srcc else set()
            if p.wr & (c.rd - cs):
                req = max(req, 8)
            if p.wr & cs and (c.srcc != p.dst or c.shape != p.shape):
                req = max(req, 6)
            if p.wr & c.wr and (c.dst != p.dst or c.srcc != p.dst):
                req = max(req, 6)
        elif k in VALU_KINDS or k in MEM_KINDS:
            if p.wr & (c.rd | c.wr):
                req = max(req, 8)
            if k in VALU_KINDS and p.srcc and (rng(*p.srcc) & c.wr):
                req = max(req, 3)
    if p.kind == "salu" and "m0" in p.wr and k == "dma":
        req = max(req, 1)
    if p.kind == "vst" and (p.stdata & c.wr):
        req = max(req, 2)
    return req


class Prog:
    def __init__(self):
        self.ins = []
        self.pri = 0
        self.tag = ""
        self.lastbar = None

    def add(self, i, deps=(), waits=()):
        i.idx = len(self.ins)
        i.pri = (self.pri, i.idx)
        i.tag = self.tag
        for d in deps:
            if d is None:
                continue
            i.deps.append(d if isinstance(d, tuple) else (d, 0))
        i.waits = [w for w in waits if w is not None]
        self.ins.append(i)
        return i

    @staticmethod
    def _op(x, rd):
        if isinstance(x, int):
            rd.add(x)
            return R(x)
        if isinstance(x, tuple):
            if x[0] == "c":
                v = x[1]
                if isinstance(v, float):
                    return repr(v)
                return hex(v & 0xFFFFFFFF) if v > 64 or v < -16 else str(v)
            if x[0] == "neg":
                rd.add(x[1])
                return f"-{R(x[1])}"
            raise ValueError(x)
        if isinstance(x, str):
            rd.update(Prog.sregs(x))
            return x
        raise ValueError(x)

    @staticmethod
    def sregs(x):
        if x.startswith("s["):
            a, b = x[2:-1].split(":")
            return {f"s{i}" for i in range(int(a), int(b) + 1)}
        return {x}

    def valu(self, op, dst, *srcs, kind="valu", **kw):
        rd = set()
        ops = [self._op(s, rd) for s in srcs]
        return self.add(I(f"{op} {R(dst)}, " + ", ".join(ops), kind, rd, {dst}, 2 if kind == "trans" else 1), **kw)

    def trans(self, op, dst, src, **kw):
        return self.valu(op, dst, src, kind="trans", **kw)

    def cmp(self, op, a, b, dst="vcc"):
        rd = set()
        oa, ob = self._op(a, rd), self._op(b, rd)
        return self.add(I(f"{op} {dst}, {oa}, {ob}", "valu", rd, self.sregs(dst)))

    def cndmask(self, dst, f, t, mask="vcc"):
        rd = set(self.sregs(mask))
        of, ot = self._op(f, rd), self._op(t, rd)
        return self.add(I(f"v_cndmask_b32 {R(dst)}, {of}, {ot}, {mask}", "valu", rd, {dst}))

    def rfl(self, sdst, v):
        return self.add(I(f"v_readfirstlane_b32 {sdst}, {R(v)}", "rfl", {v}, {sdst}))

    def perm(self, which, a, b):
        return self.add(I(f"v_permlane{which}_swap_b32 {R(a)}, {R(b)}", "perm", {a, b}, {a, b}, 2))

    def salu(self, op, dst, *srcs, **kw):
        rd = set()
        ops = []
        for s in srcs:
            if isinstance(s, int):
                ops.append(hex(s & 0xFFFFFFFF) if (s > 64 or s < -16) else str(s))
            else:
                ops.append(s)
                rd.update(self.sregs(s))
        wr = set(self.sregs(dst)) if dst else set()
        if op.startswith(("s_cselect", "s_cmov", "s_addc")):
            rd.add("scc")
        if op.startswith("s_cmov"):
            rd |= wr
        if not op.startswith(("s_mov", "s_cselect", "s_cmov", "s_mul_i32", "s_getpc")):
            wr.add("scc")
        return self.add(I(f"{op} " + ", ".join(([dst] if dst else []) + ops), "salu", rd, wr), **kw)

    def mfma(self, d, a, b, c, k32=True, **kw):
        na = 4 if k32 else 2
        op = "v_mfma_f32_16x16x32_bf16" if k32 else "v_mfma_f32_16x16x16_bf16"
        rd = rng(a, na) | rng(b, na)
        if c is not None:
            rd |= rng(c, 4)
        cs = R(c, 4) if c is not None else "0"
        i = I(f"{op} {R(d, 4)}, {R(a, na)}, {R(b, na)}, {cs}", "mfma", rd, rng(d, 4), 2)
        i.srcc = (c, 4) if c is not None else None
        i.dst = (d, 4)
        i.shape = k32
        return self.add(i, **kw)

    def dsr(self, op, dst, n, addr, off=0, **kw):
        assert 0 <= off < 65536, off
        o = f" offset:{off}" if off else ""
        return self.add(I(f"{op} {R(dst, n)}, {R(addr)}{o}", "dsr", {addr}, rng(dst, n)), **kw)

    def dsw(self, op, addr, src, n, off=0, **kw):
        assert 0 <= off < 65536, off
        o = f" offset:{off}" if off else ""
        return self.add(I(f"{op} {R(addr)}, {R(src, n)}{o}", "dsw", {addr} | rng(src, n), (), n + 1), **kw)

    def _srd(self, srd, soff):
        s = {f"s{srd + i}" for i in range(4)}
        if soff != "0":
            s.add(soff)
        return s

    def vld(self, op, dst, n, voff, srd, soff="0", off=0, lat=2000, **kw):
        o = f" offset:{off}" if off else ""
        i = I(f"{op} {R(dst, n)}, {R(voff)}, {SR(srd, 4)}, {soff} offen{o}", "vld", {voff} | self._srd(srd, soff),
              rng(dst, n), 2)
        i.vlat = lat
        return self.add(i, **kw)

    def vst(self, op, src, n, voff, srd, soff="0", off=0, flags="", **kw):
        o = f" offset:{off}" if off else ""
        i = I(f"{op} {R(src, n)}, {R(voff)}, {SR(srd, 4)}, {soff} offen{o}{flags}", "vst",
              {voff} | rng(src, n) | self._srd(srd, soff), (), n + 1)
        i.stdata = rng(src, n) if n >= 3 else set()
        i.vlat = 1000
        return self.add(i, **kw)

    def dma(self, voff, srd, soff, lat=1500, flags="", **kw):
        i = I(f"buffer_load_dwordx4 {R(voff)}, {SR(srd, 4)}, {soff} offen lds{flags}", "dma",
              {voff, "m0"} | self._srd(srd, soff), (), 2)
        i.vlat = lat
        return self.add(i, **kw)

    def bar(self, deps=(), waits=()):
        b = self.add(I("s_barrier", "bar"), deps=list(deps) + [self.lastbar], waits=waits)
        self.lastbar = b
        return b

    def raw(self, text, kind="salu", rd=(), wr=(), slots=1, **kw):
        return self.add(I(text, kind, rd, wr, slots), **kw)

    def build(self):
        lastw = {}
        readers = {}
        for i in self.ins:
            i.succ = []
            i.npred = 0
            i.rtime = i.nb
            i.rstate = 0
        for c in self.ins:
            preds = {}

            def edge(p, lat):
                if p is c:
                    return
                preds[p] = max(preds.get(p, 0), lat)

            for r in c.rd:
                p = lastw.get(r)
                if p is not None:
                    edge(p, -1 if p.kind in ("dsr", "vld") else 0)
            for r in c.wr:
                p = lastw.get(r)
                if p is not None:
                    edge(p, -1 if p.kind in ("dsr", "vld") else 0)
                for p in readers.get(r, ()):
                    edge(p, 0)
            memdone = set()
            for r in c.rd | c.wr:
                p = lastw.get(r)
                if p is not None and p.kind in ("dsr", "vld"):
                    memdone.add(p)
            for w in c.waits:
                edge(w, 0)
                memdone.add(w)
            for p, lat in c.deps:
                edge(p, lat)
            for p, lat in preds.items():
                p.succ.append((c, max(lat, 0), hazard(p, c), p in memdone))
                c.npred += 1
            c.waits = list(memdone)
            for r in c.rd:
                readers.setdefault(r, []).append(c)
            for r in c.wr:
                lastw[r] = c
                readers[r] = []

    def schedule(self, dma_gap=88, max_vm=12, verbose=False):
        self.build()
        ready = [i for i in self.ins if i.npred == 0]
        out = []
        st = {"t": 0, "pipe": 0, "pos": 0, "vmdone": 0, "last": None}
        vmq = []
        stats = {"mfma_idle": 0, "empty": 0}

        def issue(i, t, cost):
            i.t = t
            i.pos = st["pos"]
            st["pos"] += 1
            out.append(i)
            ready.remove(i)
            if i.kind in VM_KINDS:
                i.done = max(t + i.vlat, st["vmdone"] + (dma_gap if i.kind == "dma" else 16))
                st["vmdone"] = i.done
                vmq.append(i.done)
            elif i.kind in LDS_KINDS:
                i.done = t + LAT_LDS
            for c, lat, hz, md in i.succ:
                rt = t + lat
                if md:
                    rt = max(rt, i.done + 16)
                c.rtime = max(c.rtime, rt)
                c.rstate = max(c.rstate, i.pos + 1 + hz)
                c.npred -= 1
                if c.npred == 0:
                    ready.append(c)
            st["t"] = t + cost
            st["last"] = i.kind

        def ok(i, t):
            if i.rtime > t or i.rstate > st["pos"]:
                return False
            if i.kind in VM_KINDS:
                if sum(1 for d in vmq[-max_vm:] if d > t) >= max_vm:
                    return False
            return True

        def best(pred):
            b = None
            for i in ready:
                if pred(i) and (b is None or i.pri < b.pri):
                    b = i
            return b

        n = len(self.ins)
        while len(out) < n:
            t = st["t"]
            pipe = st["pipe"]
            if t >= pipe:
                m = best(lambda i: i.kind == "mfma" and ok(i, t))
                if m is not None:
                    if out and stats.get("started"):
                        stats["mfma_idle"] += t - pipe
                    stats["started"] = True
                    issue(m, t, 4)
                    st["pipe"] = t + 16
                    s = best(lambda i: i.kind in SCALAR_KINDS and ok(i, t + 4))
                    if s is not None:
                        issue(s, t + 4, 4)
                    st["t"] = t + 8
                    continue
            room = pipe - t
            pend = any(i.kind == "mfma" and i.rtime <= max(pipe, t) for i in ready)
            lastv = st["last"] in VALU_KINDS

            def fits(i):
                if i.kind == "mfma" or not ok(i, t):
                    return False
                if not pend or room <= 0:
                    return True
                if i.kind in SCALAR_KINDS:
                    return False
                if lastv and i.kind in MEM_KINDS:
                    return False
                return i.slots * 4 <= room or (room >= 8 and i.slots > 2)

            f = best(fits)
            if f is not None and pend and room >= 8 and f.kind in VALU_KINDS and f.slots == 1:
                second = best(lambda i: i is not f and i.kind != "mfma" and i.kind not in SCALAR_KINDS
                              and i.slots == 1 and ok(i, t))
                if second is not None and second.kind in MEM_KINDS:
                    f = second
            if f is None and pend and room > 0:
                f = best(lambda i: i.kind in SCALAR_KINDS and ok(i, t))
            if f is not None:
                pen = 8 if (lastv and f.kind in MEM_KINDS) else 0
                issue(f, t + pen, 4 * f.slots)
                continue
            if room > 0:
                stats["empty"] += room
                st["t"] = pipe
                st["last"] = None
                continue
            cand = [i for i in ready if i.rtime <= t and i.rstate > st["pos"]]
            if cand:
                b = min(cand, key=lambda i: i.rstate)
                k = b.rstate - st["pos"]
                nop = I(f"s_nop {k - 1}", "nop")
                nop.t = t
                nop.pos = st["pos"]
                nop.slots = k
                nop.waits = []
                out.append(nop)
                n += 1
                st["pos"] += k
                st["t"] = t + 4 * k
                st["last"] = None
                continue
            nxt = min([i.rtime for i in ready if i.rtime > t] + [d for d in vmq[-max_vm:] if d > t])
            st["t"] = nxt
            st["last"] = None
        self.order = out
        self.total = st["t"]
        self.stats = stats
        return out

    def emit(self, annotate=False):
        order = self.order
        n = len(order)
        lseq, vseq = {}, {}
        lcount = [0] * (n + 1)
        vcount = [0] * (n + 1)
        for k, i in enumerate(order):
            lcount[k + 1] = lcount[k]
            vcount[k + 1] = vcount[k]
            if i.kind in LDS_KINDS:
                lseq[i] = lcount[k]
                lcount[k + 1] += 1
            if i.kind in VM_KINDS:
                vseq[i] = vcount[k]
                vcount[k + 1] += 1
        where = {i: k for k, i in enumerate(order)}
        ins_wait = {}
        ldone = vdone = 0
        nfree = npaid = 0
        lastm = -1
        for k, i in enumerate(order):
            needl = max([lseq[w] + 1 for w in i.waits if w in lseq], default=0)
            needv = max([vseq[w] + 1 for w in i.waits if w in vseq], default=0)
            if needl > ldone or needv > vdone:
                newest = max(where[w] for w in i.waits
                             if (w in lseq and lseq[w] >= ldone) or (w in vseq and vseq[w] >= vdone))
                pos = None
                j = k - 1
                back = 0
                while j > newest and back < 2:
                    if order[j].kind == "mfma":
                        back += 1
                        if (j + 1) in ins_wait:
                            pos = j + 1
                            break
                        if order[j + 1].kind not in SCALAR_KINDS + ("nop",):
                            pos = j + 1
                            break
                    j -= 1
                if pos is None:
                    pos = k
                    if pos not in ins_wait:
                        npaid += 1
                else:
                    nfree += 1
                w = ins_wait.setdefault(pos, [0, 0])
                if needl > ldone:
                    tt = order[pos - 1].t if pos else 0
                    for q in range(pos - 1, -1, -1):
                        o = order[q]
                        if o in lseq:
                            if lseq[o] < needl:
                                break
                            if o.done + 32 <= tt:
                                needl = lseq[o] + 1
                                break
                    needl = max(needl, lcount[pos] - 15)
                    w[0] = max(w[0], needl)
                    ldone = max(ldone, needl)
                if needv > vdone:
                    needv = max(needv, vcount[pos] - 63)
                    w[1] = max(w[1], needv)
                    vdone = max(vdone, needv)
            if i.drain:
                ldone = lcount[k + 1]
        lines = []
        hist = []
        nn = 0
        for k, i in enumerate(order):
            if k in ins_wait:
                lg, vm = ins_wait[k]
                parts = []
                if vm:
                    parts.append(f"vmcnt({vcount[k] - vm})")
                if lg:
                    parts.append(f"lgkmcnt({lcount[k] - lg})")
                lines.append("    s_waitcnt " + " ".join(parts))
                hist.append((None, 1))
            need = 0
            dist = 0
            for p, ws in reversed(hist):
                if p is not None:
                    need = max(need, hazard(p, i) - dist)
                dist += ws
                if dist >= 10:
                    break
            if need > 0:
                lines.append(f"    s_nop {need - 1}")
                hist.append((None, need))
                nn += 1
            txt = i.text
            if annotate:
                txt = f"{txt:<90} ; t={i.t} {i.tag}"
            for l in txt.split("\n"):
                lines.append("    " + l)
            hist.append((i if i.kind != "nop" else None, i.slots if i.kind == "nop" else 1))
            if len(hist) > 16:
                hist.pop(0)
        self.estats = {"free_waits": nfree, "paid_waits": npaid, "late_nops": nn}
        return "\n".join(lines) + "\n"
```

```python
import math
import os
import struct
import sys

sys.path.insert(0, os.path.dirname(os.path.abspath(__file__)))
from sched import Prog, I, R, C, rng

NAME = "standalone__neighborhood_dinat__vision"
ENV = os.environ.get

XROW = 7744
XB = 0
EB = 8 * XROW
EROW = 320
EHEAD = 11 * EROW
OB = EB + 4 * EHEAD
WB = OB + 12288
LDS_TOTAL = WB + 4 * 18432
RSTR = 172032

S_X, S_W, S_WO, S_RPB, S_OUT = 4, 8, 12, 16, 20
S_TH, S_TW, S_WAVE, S_C, S_PIX, S_XB, S_320 = "s34", "s35", "s36", "s37", "s38", "s39", "s40"
S_M0 = ["s41", "s42"]
S_XR = {0: "s43", 1: "s44", 2: "s45", 17: "s46", 18: "s47", 19: "s48"}
S_WCOL, S_WLDS, S_OB = "s49", "s50", "s51"
S_T = ["s52", "s53", "s54", "s55"]
S_XO = "s56"
S_WOFF = "s57"
S_SO = ["s58", "s59"]
S_CODE0 = 60
STAMP0 = 24

K0 = 0
V0 = 66
Q0 = 132
SQ = [144 + 4 * i for i in range(8)]
PQ = [176, 180]
OQ = 184
ACC = [200 + 4 * i for i in range(6)]
XA, XQ, XQW, XC = 224, 225, 226, 227
ELA, ELB, ERB, ERC, SH2, SHC = 228, 229, 230, 231, 232, 233
ET = [234, 235, 236]
OW4, OW2, ORD, WOP, WOC = 237, 238, 239, 240, 241
STL4, STL2, STR4, STR2 = 242, 243, 244, 245
XD = [246, 247]
M0, M1, MT = 248, 249, 250
WD = [251, 252, 253]
WT = [254, 255]
A = 256
WK, WV, WQ = A + 0, A + 72, A + 144
ONES = A + 216
RING = [A + 220 + 4 * i for i in range(9)]


def f32bits(x):
    return struct.unpack("<I", struct.pack("<f", x))[0]


NEG = f32bits(-1e30)


def kreg(t):
    k, n = t
    return K0 + 6 * {"A": n % 4, "B": 4 + n % 4, "C": 8 + n % 3}[k]


def vreg(t, td):
    k, n = t
    if k == "C":
        o = 16 + 2 * (n % 3)
    else:
        o = 8 * ((n >> 1) & 1) + {("A", 0): 0, ("B", 0): 2, ("B", 1): 4, ("A", 1): 6}[(k, n & 1)]
    return V0 + 22 * td + o


def block_groups(side, s):
    if side == "L":
        return [sorted([("A", p), ("B", p)], key=lambda t: vreg(t, 0)) for p in range(s, s + 4)]
    bs = [("B", p) for p in range(s, s + 4)]
    g1 = sorted([t for t in bs if ((t[1] >> 1) & 1) == ((s >> 1) & 1)], key=lambda t: vreg(t, 0))
    g2 = sorted([t for t in bs if ((t[1] >> 1) & 1) != ((s >> 1) & 1)], key=lambda t: vreg(t, 0))
    cs = [("C", m) for m in range(s // 2, (2 * s + 7) // 4 + 1)]
    groups = [g1, g2]
    best = None
    for i in range(len(cs)):
        for j in range(i + 1, len(cs)):
            if abs(vreg(cs[i], 0) - vreg(cs[j], 0)) == 2 and (best is None):
                best = (i, j)
    if best is None:
        groups += [[t] for t in cs]
    else:
        pair = sorted([cs[best[0]], cs[best[1]]], key=lambda t: vreg(t, 0))
        rest = [[t] for k, t in enumerate(cs) if k not in best]
        newest = cs[-1]
        if newest in pair:
            groups += rest + [pair]
        else:
            groups += [pair] + rest
    return groups


def rowidx(thc, br, qr, slot):
    act = slot
    if thc == 0 and slot < 2:
        if br != 0:
            return 7
        act = slot + 8
    if thc == 2 and slot >= 18:
        if br != 6:
            return 7
        act = slot - 8
    sr = max(qr, 3) if thc == 0 else (min(qr, 10) if thc == 2 else qr)
    if not (sr <= act <= sr + 6):
        return 7
    rr = act - qr + 3
    if 3 <= rr <= 9:
        return rr - 3
    return rr - 2 if thc == 0 else rr + 8


def code_of(thc, br, kind, n):
    v = 0
    if kind == "C":
        for qh in range(2):
            for g in range(4):
                v |= rowidx(thc, br, 2 * br + qh, 4 * n + g) << (4 * (4 * qh + g))
    else:
        for qh in range(2):
            for gh in range(2):
                v |= rowidx(thc, br, 2 * br + qh, 2 * n + gh) << (4 * (2 * qh + gh))
    return v


class Pool:
    def __init__(self, regs):
        self.regs = regs
        self.k = 0

    def get(self):
        r = self.regs[self.k % len(self.regs)]
        self.k += 1
        return r


def gen():
    p = Prog()
    PROF = ENV("PROF")
    STFLAGS = ENV("STFLAGS", " sc0 sc1")
    ring, accp, sp, pp, etp = Pool(RING), Pool(ACC), Pool(SQ), Pool(PQ), Pool(ET)
    stamps = []

    def stamp(name, deps):
        if not PROF:
            return
        k = len(stamps)
        stamps.append(name)
        i = p.raw(f"s_memtime s[100:101]\ns_waitcnt lgkmcnt(0)\nv_writelane_b32 {R(A + 255 - 256 + 0) if False else 'v255'}, s100, {k}"
                  if False else f"s_memtime s[100:101]\ns_waitcnt lgkmcnt(0)\ns_mov_b32 s{STAMPS[k]}, s100",
                  "salu", (), {"s100", "s101", f"s{STAMPS[k]}"}, deps=deps)
        i.drain = True
        return i

    STAMPS = [3, 96, 97, 98, 99, 24, 25, 26, 27, 28, 29, 30, 31, 32, 33]

    p.tag = "pro"
    stamp("start", [])
    ld = p.raw("s_load_dwordx4 s[24:27], s[0:1], 0\ns_load_dwordx4 s[28:31], s[0:1], 16\ns_load_dwordx2 s[32:33], s[0:1], 32",
               "salu", (), {"kload"})
    T0, T1, T2, T3 = S_T
    LANE, G, C8, RB = 1, 2, 3, 4
    t0, t1, t2, t3, t4, t5 = 5, 6, 7, 8, 9, 10
    p.valu("v_lshrrev_b32", t0, C(6), 0)
    p.rfl(S_WAVE, t0)
    p.valu("v_and_b32", LANE, C(63), 0)
    p.salu("s_and_b32", T0, "s2", 7)
    p.salu("s_lshr_b32", T1, "s2", 3)
    p.salu("s_and_b32", T2, T0, 1)
    p.salu("s_lshl_b32", T2, T2, 2)
    p.salu("s_lshr_b32", T3, T1, 3)
    p.salu("s_or_b32", S_TH, T2, T3)
    p.salu("s_and_b32", S_TW, T1, 7)
    p.salu("s_lshr_b32", T2, T0, 2)
    p.salu("s_mul_i32", T2, T2, 86016)
    p.salu("s_bfe_u32", T3, T0, 0x10001)
    p.salu("s_mul_i32", T3, T3, 384)
    p.salu("s_add_u32", S_PIX, T2, T3)

    def wdma_offsets(pitch):
        for j in range(3):
            p.valu("v_add_u32", MT, C(64 * j), ORD)
            p.valu("v_mul_u32_u24", M0, C(10923), MT)
            p.valu("v_lshrrev_b32", M0, C(16), M0)
            p.valu("v_mul_u32_u24", M1, C(6), M0)
            p.valu("v_sub_u32", MT, MT, M1)
            p.valu("v_lshrrev_b32", M1, C(1), M0)
            p.valu("v_and_b32", M1, C(4), M1)
            p.valu("v_xor_b32", M0, M0, M1)
            p.valu("v_mul_u32_u24", M0, C(pitch), M0)
            p.valu("v_lshl_add_u32", WD[j], MT, C(4), M0)

    p.valu("v_mov_b32", ORD, LANE)
    wdma_offsets(1152)
    p.salu("s_mul_i32", S_WCOL, S_WAVE, 96)
    p.salu("s_mul_i32", S_WLDS, S_WAVE, 18432)
    p.salu("s_add_u32", S_WLDS, S_WLDS, WB)
    p.salu("s_lshl_b32", S_M0[0], S_WAVE, 10)
    p.salu("s_add_u32", S_M0[1], S_M0[0], 4096)
    p.salu("s_min_u32", S_M0[1], S_M0[1], 416 * 16)
    p.salu("s_mul_i32", T0, S_TW, 14)
    p.salu("s_sub_u32", T0, T0, 3)
    for j in range(2):
        p.salu("s_lshr_b32", T1, S_M0[j], 4)
        p.valu("v_add_u32", t0, T1, LANE)
        p.valu("v_mul_u32_u24", t1, C(2731), t0)
        p.valu("v_lshrrev_b32", t1, C(16), t1)
        p.valu("v_mul_u32_u24", t2, C(24), t1)
        p.valu("v_sub_u32", t0, t0, t2)
        p.valu("v_and_b32", t2, C(2), t1)
        p.valu("v_xor_b32", t0, t0, t2)
        p.valu("v_add_u32", t1, T0, t1)
        p.valu("v_max_i32", t1, C(0), t1)
        p.valu("v_min_i32", t1, C(111), t1)
        p.valu("v_mul_u32_u24", t1, C(768), t1)
        p.valu("v_lshl_add_u32", XD[j], t0, C(4), t1)
    p.salu("s_mul_i32", T1, S_TH, 14)
    p.salu("s_mul_i32", S_OB, T1, RSTR)
    p.salu("s_add_u32", S_OB, S_OB, S_PIX)
    p.salu("s_sub_u32", S_XB, S_OB, 3 * RSTR)
    for r, alt in ((0, 5), (1, 6), (2, 0)):
        p.salu("s_add_u32", S_XR[r], S_XB, r * RSTR)
        p.salu("s_add_u32", T1, S_PIX, alt * RSTR)
        p.salu("s_cmp_eq_u32", None, S_TH, 0)
        p.salu("s_cselect_b32", S_XR[r], T1, S_XR[r])
    kw = p.raw("s_waitcnt lgkmcnt(0)", "salu", {"kload"}, {f"s{i}" for i in range(24, 34)})
    kw.drain = True
    for srd, q, size in ((S_W, 26, 221184), (S_X, 24, 19267584), (S_RPB, 30, 1352), (S_WO, 28, 73728), (S_OUT, 32, 19267584)):
        p.salu("s_mov_b32", f"s{srd}", f"s{q}")
        p.salu("s_and_b32", f"s{srd + 1}", f"s{q + 1}", 0xFFFF)
        p.salu("s_mov_b32", f"s{srd + 2}", size)
        p.salu("s_mov_b32", f"s{srd + 3}", 0x00020000)

    LAT_W = int(ENV("LATW", 1200))
    LAT_X = int(ENV("LATX", 2000))
    slot_busy = [[] for _ in range(6)]

    def wchunk(srd, pitch, colbyte, c, lat=LAT_W):
        p.salu("s_add_u32", S_WOFF, S_WCOL, colbyte + c * 32 * pitch)
        ds = []
        for j in range(3):
            p.salu("s_add_u32", "m0", S_WLDS, c * 3072 + 1024 * j)
            ds.append(p.dma(WD[j], srd, S_WOFF, lat=lat, waits=slot_busy[c]))
        slot_busy[c] = []
        return ds

    def wread(dst, c, ds):
        for ct in range(3):
            for half in range(2):
                r = p.dsr("ds_read_b64_tr_b16", dst + 4 * (3 * c + ct) + 2 * half, 2, WT[half], off=c * 3072 + ct * 32,
                          waits=ds)
                slot_busy[c].append(r)

    xdma = {}

    def xpair(pr, deps=()):
        ds = []
        for r in (2 * pr, 2 * pr + 1):
            if r in S_XR:
                so = S_XR[r]
            else:
                so = S_XO
                p.salu("s_add_u32", S_XO, S_XB, r * RSTR)
            for j in range(2):
                p.salu("s_add_u32", "m0", S_M0[j], XB + (r & 7) * XROW)
                ds.append(p.dma(XD[j], S_X, so, lat=LAT_X, deps=deps))
        xdma[pr] = ds

    xpair(0)
    wk_d = [wchunk(S_W, 1152, 384, c, lat=LAT_X) for c in range(6)]
    xpair(1)

    p.valu("v_lshrrev_b32", G, C(4), LANE)
    p.valu("v_and_b32", C8, C(7), LANE)
    p.valu("v_bfe_u32", RB, LANE, C(3), C(1))

    EV = SQ[0]
    EM = 16
    p.salu("s_cmp_eq_u32", None, S_TH, 0)
    p.salu("s_cselect_b32", T0, 2, -8)
    p.salu("s_cmp_eq_u32", None, S_TW, 0)
    p.salu("s_cselect_b32", T1, 3, 0)
    p.salu("s_cselect_b32", T2, -3, -2)
    p.salu("s_mul_i32", T3, S_WAVE, 169)
    for it in range(4):
        p.valu("v_add_u32", t0, C(64 * it), LANE)
        p.valu("v_min_u32", t0, C(219), t0)
        p.valu("v_mul_u32_u24", t1, C(3277), t0)
        p.valu("v_lshrrev_b32", t1, C(16), t1)
        p.valu("v_mul_u32_u24", t2, C(20), t1)
        p.valu("v_sub_u32", t0, t0, t2)
        p.valu("v_add_u32", t2, C(-11), t0)
        p.valu("v_max_i32", t2, C(0), t2)
        p.valu("v_mul_u32_u24", t3, C(11), t2)
        p.valu("v_lshrrev_b32", t3, C(5), t3)
        p.valu("v_mul_u32_u24", t4, C(3), t3)
        p.valu("v_sub_u32", t2, t2, t4)
        p.valu("v_lshlrev_b32", t2, C(2), t2)
        p.valu("v_sub_u32", t3, t2, t3)
        p.valu("v_add_u32", t3, T1, t3)
        p.valu("v_add_u32", t2, T2, t2)
        p.valu("v_add_u32", t4, C(-3), t0)
        p.cmp("v_cmp_lt_u32", C(10), t0)
        p.cndmask(t0, t0, t3)
        p.cndmask(EM + it, t4, t2)
        p.valu("v_add_u32", t2, C(3), t1)
        p.valu("v_add_u32", t3, T0, t1)
        p.cmp("v_cmp_lt_u32", C(6), t1)
        p.cndmask(t2, t2, t3)
        p.valu("v_mov_b32", t3, C(32))
        p.cmp("v_cmp_eq_u32", C(7), t1)
        p.cndmask(EM + it, EM + it, t3)
        p.valu("v_mul_i32_i24", t2, C(13), t2)
        p.valu("v_add3_u32", t0, t0, t2, T3)
        for r in range(4):
            tr = 20 + 4 * it + r
            p.valu("v_add_lshl_u32", tr, t0, C(r), C(1))
            p.vld("buffer_load_ushort", EV + 4 * it + r, 1, tr, S_RPB, lat=LAT_X)

    xpair(2)
    xpair(3)

    p.salu("s_mov_b32", S_C, f32bits((48 ** -0.5) * math.log2(math.e)))
    p.salu("s_mov_b32", S_320, EROW)
    for r, alt in ((17, 111), (18, 105), (19, 106)):
        p.salu("s_add_u32", S_XR[r], S_XB, r * RSTR)
        p.salu("s_add_u32", T1, S_PIX, alt * RSTR)
        p.salu("s_cmp_eq_u32", None, S_TH, 7)
        p.salu("s_cselect_b32", S_XR[r], T1, S_XR[r])
    p.valu("v_bfe_u32", t0, LANE, C(2), C(2))
    p.valu("v_and_b32", t1, C(3), LANE)
    p.valu("v_and_b32", t2, C(1), G)
    p.valu("v_lshl_add_u32", t3, G, C(3), t0)
    for half in range(2):
        p.valu("v_xor_b32", t4, C(half), t2)
        p.valu("v_lshl_add_u32", t4, t4, C(2), t3)
        p.valu("v_mul_u32_u24", t4, C(96), t4)
        p.valu("v_lshl_add_u32", t4, t1, C(3), t4)
        p.valu("v_add_u32", WT[half], S_WLDS, t4)
    p.valu("v_lshl_add_u32", t3, G, C(2), t0)
    p.valu("v_lshrrev_b32", t4, C(1), G)
    p.valu("v_lshlrev_b32", t4, C(2), t4)
    p.valu("v_xor_b32", t3, t3, t4)
    p.valu("v_mul_u32_u24", t3, C(96), t3)
    p.valu("v_add_u32", t3, S_WLDS, t3)
    p.salu("s_and_b32", T0, S_WAVE, 1)
    p.salu("s_lshl_b32", T1, T0, 5)
    p.salu("s_lshl_b32", T2, T0, 6)
    p.salu("s_sub_u32", T2, 64, T2)
    p.valu("v_lshl_add_u32", t4, t1, C(4), t3)
    p.valu("v_add_u32", WOP, T1, t4)
    p.valu("v_lshl_add_u32", t4, t1, C(3), t3)
    p.valu("v_add_u32", WOC, T2, t4)
    p.valu("v_mul_u32_u24", t3, C(RSTR), RB)
    p.valu("v_mul_u32_u24", t4, C(768), C8)
    p.valu("v_add3_u32", t3, t3, t4, S_WCOL)
    p.valu("v_lshl_add_u32", t4, G, C(4), t3)
    p.valu("v_add_u32", STL4, T1, t4)
    p.valu("v_lshl_add_u32", t4, G, C(3), t3)
    p.valu("v_add_u32", STL2, T2, t4)
    p.valu("v_bfrev_b32", t4, C(1))
    p.cmp("v_cmp_lt_u32", C(5), C8)
    p.cndmask(STR4, STL4, t4)
    p.cndmask(STR2, STL2, t4)
    p.salu("s_mul_i32", T1, S_TW, 14 * 768)
    p.salu("s_add_u32", S_OB, S_OB, T1)
    p.valu("v_mul_u32_u24", t3, C(XROW), RB)
    for dst, co in ((XA, 0), (XQ, 3)):
        p.valu("v_add_u32", t0, C(co), C8)
        p.valu("v_and_b32", t1, C(2), t0)
        p.valu("v_xor_b32", t1, t1, G)
        p.valu("v_mul_u32_u24", t0, C(384), t0)
        p.valu("v_lshl_add_u32", t0, t1, C(4), t0)
        p.valu("v_add_u32", dst, t0, t3)
    p.valu("v_xor_b32", t1, C(1), RB)
    p.valu("v_mul_u32_u24", t1, C(7 * XROW), t1)
    p.valu("v_add_u32", XQW, t0, t1)
    p.valu("v_bfe_u32", t0, LANE, C(2), C(2))
    p.valu("v_mul_u32_u24", t0, C(XROW), t0)
    p.valu("v_and_b32", t1, C(3), LANE)
    p.valu("v_add_u32", t1, C(16), t1)
    p.valu("v_mul_u32_u24", t1, C(384), t1)
    p.valu("v_and_b32", t2, C(2), LANE)
    p.valu("v_xor_b32", t2, t2, G)
    p.valu("v_lshlrev_b32", t2, C(4), t2)
    p.valu("v_add3_u32", XC, t0, t1, t2)
    p.salu("s_lshr_b32", T1, S_WAVE, 1)
    p.salu("s_mul_i32", T1, T1, 3072)
    p.salu("s_add_u32", T1, T1, OB)
    p.salu("s_lshl_b32", T2, T0, 11)
    p.salu("s_add_u32", T2, T2, T1)
    p.valu("v_lshl_add_u32", OW4, LANE, C(4), T2)
    p.salu("s_lshl_b32", T2, T0, 3)
    p.salu("s_add_u32", T2, T2, T1)
    p.salu("s_add_u32", T2, T2, 1024)
    p.valu("v_lshl_add_u32", OW2, LANE, C(4), T2)
    p.salu("s_mul_i32", T3, S_WAVE, EHEAD)
    p.salu("s_add_u32", T3, T3, EB)
    p.valu("v_and_b32", t5, C(1), G)
    for dst, side, gadd in ((ELA, "L", 0), (ELB, "L", 2), (ERB, "R", 0), (ERC, "R", None)):
        if side == "L":
            p.valu("v_mov_b32", t0, C8)
        else:
            p.valu("v_min_u32", t0, C(5), C8)
        if gadd is None:
            p.valu("v_mov_b32", t1, C(2))
        else:
            p.valu("v_add_u32", t1, C(gadd), t5)
        p.valu("v_lshlrev_b32", t2, C(2), t1)
        p.valu("v_sub_u32", t2, t2, t0)
        p.valu("v_add_u32", t2, C(3), t2)
        p.valu("v_min_u32", t2, C(10), t2)
        if side == "R":
            p.valu("v_add_u32", t0, C(-3), t0)
        p.valu("v_mul_u32_u24", t3, C(3), t0)
        p.valu("v_add3_u32", t3, t3, t1, C(11))
        p.valu("v_mov_b32", t4, C(10))
        p.cmp("v_cmp_eq_u32", C(3), t1)
        p.cndmask(t3, t3, t4)
        p.salu("s_cmp_eq_u32", None, S_TW, 0 if side == "L" else 7)
        p.salu("s_cselect_b32", T1, 3, 0)
        p.cmp("v_cmp_gt_u32", T1, t0)
        p.cndmask(t2, t2, t3)
        p.valu("v_lshl_add_u32", dst, t2, C(4), T3)
    p.valu("v_lshrrev_b32", t0, C(1), G)
    p.valu("v_lshl_add_u32", t0, RB, C(1), t0)
    p.valu("v_lshlrev_b32", SH2, C(2), t0)
    p.valu("v_lshl_add_u32", t0, RB, C(2), G)
    p.valu("v_lshlrev_b32", SHC, C(2), t0)
    p.valu("v_mov_b32", t0, C(0x3F803F80))
    for i in range(4):
        p.valu("v_accvgpr_write_b32", ONES + i, t0)
    codes = {}
    code_reg = {}

    def code(br, kind, n):
        k = "C" if kind == "C" else "P"
        key = tuple(code_of(thc, br, k, n) for thc in range(3))
        if key not in codes:
            sreg = f"s{S_CODE0 + len(codes)}"
            assert S_CODE0 + len(codes) < 96
            codes[key] = sreg
        return codes[key]

    for br in range(7):
        for side in "LR":
            for grp in block_groups(side, br):
                for t in grp:
                    code_reg[(br, t)] = code(br, t[0], t[1])
    for key, sreg in codes.items():
        p.salu("s_mov_b32", sreg, key[1])
    for thc, thv in ((0, 0), (2, 7)):
        p.salu("s_cmp_eq_u32", None, S_TH, thv)
        for key, sreg in codes.items():
            if key[thc] != key[1]:
                p.salu("s_cmov_b32", sreg, key[thc])
    p.salu("s_mov_b32", T1, f32bits(math.sqrt(48.0)))
    p.valu("v_mov_b32", t5, C(NEG))
    ewr = []
    for it in range(4):
        for r in range(4):
            v = EV + 4 * it + r
            p.valu("v_lshlrev_b32", v, C(16), v)
            p.valu("v_mul_f32", v, T1, v)
            p.valu("v_add_u32", t0, C(r), EM + it)
            p.cmp("v_cmp_gt_u32", C(7), t0)
            p.cndmask(v, t5, v)
        p.valu("v_add_u32", t0, C(64 * it), LANE)
        p.valu("v_min_u32", t0, C(219), t0)
        p.valu("v_lshl_add_u32", t1 + (it & 1), t0, C(4), T3)
        ewr.append(p.dsw("ds_write_b128", t1 + (it & 1), EV + 4 * it, 4))

    xbar = {}
    xuse = {}

    def xread(kind, n, ks):
        f = ring.get()
        if kind in "AB":
            addr, off, pairs = XA, ((2 * n) & 7) * XROW + (3072 if kind == "B" else 0), [n]
        elif kind == "C":
            addr, off, pairs = XC, ((4 * n) & 7) * XROW, [2 * n, 2 * n + 1]
        else:
            r = 2 * n + 3
            pairs = [n + 1, n + 2]
            addr, off = (XQW, 0) if (r & 7) == 7 else (XQ, (r & 7) * XROW)
            off += 3072 if kind == "R" else 0
        p.dsr("ds_read_b128", f, 4, addr, off=XB + off + 64 * ks, deps=[xbar[q] for q in pairs])
        return f, pairs

    def proj(what, t):
        p.tag = f"{what}_{t[0]}{t[1]}"
        accs = {(w, c): accp.get() for w in what for c in range(3)}
        last = None
        for ks in range(6):
            p.pri = 0
            f, pairs = xread(t[0], t[1], ks)
            p.pri = 1
            for w in what:
                for c in range(3):
                    a = accs[(w, c)]
                    wf = {"K": WK, "V": WV, "Q": WQ}[w] + 4 * (3 * ks + c)
                    if w == "V":
                        last = p.mfma(a, f, wf, a if ks else None)
                    else:
                        last = p.mfma(a, wf, f, a if ks else None)
        for q in pairs:
            xuse.setdefault(q, []).append(last)
        p.pri = 0
        for w in what:
            for c in range(3):
                a = accs[(w, c)]
                if w == "K":
                    d = kreg(t) + 2 * c
                elif w == "V":
                    d = vreg(t, c)
                else:
                    d = Q0 + (6 if t[0] == "R" else 0) + 2 * c
                p.valu("v_cvt_pk_bf16_f32", d, a, a + 1)
                p.valu("v_cvt_pk_bf16_f32", d + 1, a + 2, a + 3)
        return last

    squad = {}

    def s_part(side, s):
        p.tag = f"S_{side}{s}"
        q = Q0 + (6 if side == "R" else 0)
        tiles = [t for grp in block_groups(side, s) for t in grp]
        idxreg = {}
        for t in tiles:
            sq = sp.get()
            squad[(side, s, t)] = sq
            p.pri = 0
            base = {("L", "A"): ELA, ("L", "B"): ELB, ("R", "B"): ERB, ("R", "C"): ERC}[(side, t[0])]
            key = (t[0] == "C", t[1])
            if key not in idxreg:
                idxreg = {key: etp.get()}
                p.valu("v_bfe_u32", idxreg[key], code_reg[(s, t)], SHC if t[0] == "C" else SH2, C(4))
                first = side == "L"
            else:
                first = False
            ar = etp.get() if first else idxreg[key]
            p.valu("v_mad_u32_u24", ar, idxreg[key], S_320, base)
            p.dsr("ds_read_b128", sq, 4, ar, waits=ewr)
            p.mfma(sq, kreg(t), q, sq)
            last = p.mfma(sq, kreg(t) + 4, q + 4, sq, k32=False)
        return last

    def xpv(side, s):
        p.tag = f"X_{side}{s}"
        p.pri = 1
        groups = block_groups(side, s)
        tiles = [t for grp in groups for t in grp]
        vals = [squad[(side, s, t)] + r for t in tiles for r in range(4)]
        p.valu("v_max3_f32", M0, vals[0], vals[1], vals[2])
        p.valu("v_max3_f32", M1, vals[3], vals[4], vals[5])
        k = 6
        m = M0
        while k < len(vals):
            p.valu("v_max3_f32", m, m, vals[k], vals[k + 1])
            m = M1 if m == M0 else M0
            k += 2
        p.valu("v_max_f32", M0, M0, M1)
        p.valu("v_mov_b32", M1, M0)
        p.perm(16, M0, M1)
        p.valu("v_max_f32", M0, M0, M1)
        p.valu("v_mov_b32", M1, M0)
        p.perm(32, M0, M1)
        p.valu("v_max_f32", M0, M0, M1)
        p.valu("v_mul_f32", MT, S_C, M0)
        last = None
        for gi, grp in enumerate(groups):
            pq = pp.get()
            p.pri = 1
            p.tag = f"X_{side}{s}"
            for j, t in enumerate(grp):
                sq = squad[(side, s, t)]
                for r in range(4):
                    p.valu("v_fma_f32", sq + r, sq + r, S_C, ("neg", MT))
                for r in range(4):
                    p.trans("v_exp_f32", sq + r, sq + r)
                p.valu("v_cvt_pk_bf16_f32", pq + 2 * j, sq, sq + 1)
                p.valu("v_cvt_pk_bf16_f32", pq + 2 * j + 1, sq + 2, sq + 3)
            p.pri = 0
            p.tag = f"PV_{side}{s}"
            k32 = len(grp) == 2
            last = p.mfma(OQ + 12, ONES, pq, OQ + 12 if gi else None, k32=k32)
            for td in range(3):
                last = p.mfma(OQ + 4 * td, vreg(grp[0], td), pq, OQ + 4 * td if gi else None, k32=k32)
        return last

    owr = {}

    def epi(side, s, deps):
        p.tag = f"E_{side}{s}"
        p.pri = 0
        p.trans("v_rcp_f32", OQ + 13, OQ + 12)
        for i in range(6):
            p.valu("v_mul_f32", OQ + 2 * i, OQ + 2 * i, OQ + 13)
            p.valu("v_mul_f32", OQ + 2 * i + 1, OQ + 2 * i + 1, OQ + 13)
            p.valu("v_cvt_pk_bf16_f32", OQ + i, OQ + 2 * i, OQ + 2 * i + 1)
        off = 6144 if side == "R" else 0
        owr[(side, s)] = [p.dsw("ds_write_b128", OW4, OQ, 4, off=off, deps=deps),
                          p.dsw("ds_write_b64", OW2, OQ + 4, 2, off=off, deps=deps)]

    wo_d = []

    def outproj(s, bar):
        p.tag = f"OUT{s}"
        accs = [[accp.get() for m in range(3)] for b in range(2)]
        last = None
        for u in range(6):
            j, r = divmod(u, 3)
            b16 = [(6 * j, 6 * j + 1), (6 * j + 2, 6 * j + 5), (6 * j + 3, 6 * j + 4)][r]
            p.pri = 0
            of = []
            for b in range(2):
                f = ring.get()
                p.dsr("ds_read_b128", f, 4, ORD, off=6144 * b + 1024 * u, deps=[bar])
                of.append(f)
            for m in range(3):
                p.pri = 0
                wf = ring.get()
                for h in range(2):
                    p.dsr("ds_read_b64_tr_b16", wf + 2 * h, 2, WOC if m == 2 else WOP,
                          off=b16[h] * 1536 + (8 if m == 1 else 0), waits=wo_d)
                p.pri = 1
                for b in range(2):
                    a = accs[b][m]
                    last = p.mfma(a, wf, of[b], a if u else None)
        p.pri = 0
        for b in range(2):
            a0, a1, a2 = accs[b]
            p.salu("s_add_u32", S_SO[b], S_OB, 2 * s * RSTR + b * 8 * 768)
            p.valu("v_cvt_pk_bf16_f32", a0, a0, a0 + 1)
            p.valu("v_cvt_pk_bf16_f32", a0 + 1, a0 + 2, a0 + 3)
            p.valu("v_cvt_pk_bf16_f32", a0 + 2, a1, a1 + 1)
            p.valu("v_cvt_pk_bf16_f32", a0 + 3, a1 + 2, a1 + 3)
            p.vst("buffer_store_dwordx4", a0, 4, STR4 if b else STL4, S_OUT, S_SO[b], flags=STFLAGS)
            p.valu("v_cvt_pk_bf16_f32", a2, a2, a2 + 1)
            p.valu("v_cvt_pk_bf16_f32", a2 + 1, a2 + 2, a2 + 3)
            p.vst("buffer_store_dwordx2", a2, 2, STR2 if b else STL2, S_OUT, S_SO[b], flags=STFLAGS)
        return last

    p.tag = "wu"
    p.pri = 0
    wv_d, wq_d = [], []
    for c in range(6):
        wread(WK, c, wk_d[c])
    for c in range(6):
        wv_d.append(wchunk(S_W, 1152, 768, c))
    xbar[0] = p.bar(waits=xdma[0])
    stamp("X0+Wk", [xbar[0]] + slot_busy[5])
    proj("K", ("A", 0))
    proj("K", ("B", 0))
    xbar[1] = p.bar(waits=xdma[1])
    proj("K", ("A", 1))
    proj("K", ("B", 1))
    proj("K", ("C", 0))
    xbar[2] = p.bar(waits=xdma[2])
    proj("K", ("A", 2))
    proj("K", ("B", 2))
    xbar[3] = p.bar(waits=xdma[3])
    p.tag = "wu"
    for c in range(6):
        wread(WV, c, wv_d[c])
        wq_d.append(wchunk(S_W, 1152, 0, c))
    proj("K", ("A", 3))
    proj("K", ("B", 3))
    l = proj("K", ("C", 1))
    stamp("K done", [l])
    for t in (("A", 0), ("B", 0), ("A", 1), ("B", 1), ("C", 0)):
        proj("V", t)
    p.tag = "wu"
    wdma_offsets(384)
    p.valu("v_lshlrev_b32", ORD, C(4), ORD)
    p.valu("v_add_u32", ORD, C(OB), ORD)
    for c in range(6):
        wread(WQ, c, wq_d[c])
        wo_d += wchunk(S_WO, 384, 0, c)
    proj("Q", ("L", 0))
    l = s_part("L", 0)
    stamp("S_L0", [l])

    for s in range(7):
        proj("Q", ("R", s))
        if s == 0:
            p.pri = 0
            b1 = p.bar(deps=xuse[0] + xuse[1])
            xpair(4, deps=[b1])
            xpair(5, deps=[b1])
            for t in (("A", 2), ("B", 2), ("A", 3), ("B", 3)):
                proj("V", t)
            proj("Q", ("L", 1))
            proj("V", ("C", 1))
            lo = None
        else:
            if s < 6:
                proj("Q", ("L", s + 1))
            p.pri = 0
            p.tag = f"B1_{s}"
            b1 = p.bar(deps=xuse.get(s + 1, []) if s + 5 < 10 else [],
                       waits=owr[("L", s - 1)] + owr[("R", s - 1)] + xdma.get(s + 4, []))
            stamp(f"B1_{s}", [b1])
            if s + 4 < 10:
                xbar[s + 4] = b1
            if s + 5 < 10:
                xpair(s + 5, deps=[b1])
            if s & 1:
                proj("KV", ("C", (s + 3) // 2))
            lo = outproj(s - 1, b1)
        xpv("L", s)
        s_part("R", s)
        p.pri = 0
        p.tag = f"B2_{s}"
        if s == 0:
            b2 = p.bar(waits=xdma[4])
            xbar[4] = b2
        else:
            b2 = p.bar(deps=[lo])
        epi("L", s, [b2])
        xpv("R", s)
        if s < 6:
            proj("KV", ("A", s + 4))
            proj("KV", ("B", s + 4))
            s_part("L", s + 1)
        epi("R", s, [b2])
    p.pri = 0
    b1 = p.bar(waits=owr[("L", 6)] + owr[("R", 6)])
    stamp("B1_7", [b1])
    outproj(6, b1)

    p.schedule(dma_gap=int(ENV("DMAGAP", 88)))
    body = p.emit(annotate=bool(ENV("ANN")))
    cnt = {}
    slots = 0
    for i in p.order:
        cnt[i.kind] = cnt.get(i.kind, 0) + 1
        if i.kind not in ("mfma", "salu", "bar", "nop"):
            slots += i.slots
    sys.stderr.write(f"counts {cnt} vec-slots {slots} model-cycles {p.total} {p.stats} {p.estats} codes {len(codes)}\n")
    if ENV("TL"):
        seen = {}
        for i in p.order:
            if i.kind != "nop":
                seen.setdefault(i.tag, [i.t, i.t])[1] = i.t
        for k, v in seen.items():
            sys.stderr.write(f"{k:10s} {v[0]:6d} {v[1]:6d}\n")

    tailc = ""
    if PROF:
        k = len(stamps)
        stamps.append("end")
        tailc = f"""    s_waitcnt vmcnt(0)
    s_memtime s[100:101]
    s_load_dwordx2 s[8:9], s[0:1], 48
    s_waitcnt lgkmcnt(0)
    s_mov_b32 s{STAMPS[k]}, s100
    s_mov_b32 s4, s8
    s_and_b32 s5, s9, 0xffff
    s_mov_b32 s6, 0x1000000
    s_mov_b32 s7, 0x20000
    s_lshl_b32 s10, s2, 2
    s_add_u32 s10, s10, {S_WAVE}
    s_lshl_b32 s10, s10, 6
    v_mov_b32 v0, s10
"""
        for j in range(k + 1):
            tailc += f"    v_mov_b32 v1, s{STAMPS[j]}\n    buffer_store_dword v1, v0, s[4:7], 0 offen offset:{4 * j}\n"
    head = f"""; Fused DiNAT neighborhood attention (QKV proj + 7x7 dilated NA + out proj), one 14x14 query tile per workgroup,
{('; stamps=' + ','.join(stamps)) if PROF else ';'}
; @launch grid=(256,1,1) block=(256,1,1) lds={LDS_TOTAL}
.amdgcn_target "amdgcn-amd-amdhsa--gfx950"
.text
.globl {NAME}_kernel
.p2align 8
.type {NAME}_kernel,@function
{NAME}_kernel:
    s_cmp_ge_u32 s2, 256
    s_cbranch_scc0 L_go
    s_endpgm
L_go:
"""
    tail = f"""    s_endpgm
.section .rodata,"a"
.p2align 6
.amdhsa_kernel {NAME}_kernel
  .amdhsa_next_free_vgpr 512
  .amdhsa_next_free_sgpr 102
  .amdhsa_accum_offset 256
  .amdhsa_group_segment_fixed_size 0
  .amdhsa_kernarg_size 56
  .amdhsa_user_sgpr_count 2
  .amdhsa_user_sgpr_kernarg_segment_ptr 1
  .amdhsa_system_sgpr_workgroup_id_x 1
.end_amdhsa_kernel
"""
    return head + body + tailc + tail


if __name__ == "__main__":
    out = sys.argv[1] if len(sys.argv) > 1 else f"/code/{NAME}.s"
    open(out, "w").write(gen())
```

```python
import heapq


def R(a, n=1):
    p = "v"
    if a >= 256:
        p = "a"
        a -= 256
    return f"{p}{a}" if n == 1 else f"{p}[{a}:{a + n - 1}]"


def SR(a, n=1):
    return f"s{a}" if n == 1 else f"s[{a}:{a + n - 1}]"


def rng(a, n):
    return set(range(a, a + n))


def C(v):
    return ("c", v)


VALU_KINDS = ("valu", "trans", "perm", "rfl")
LDS_KINDS = ("dsr", "dsw")
VM_KINDS = ("vld", "vst", "dma")
MEM_KINDS = LDS_KINDS + VM_KINDS
SCALAR_KINDS = ("salu", "bar")

import os
LAT_LDS = int(os.environ.get('LATLDS', 128))


class I:
    __slots__ = ("text", "kind", "rd", "wr", "deps", "waits", "pri", "slots", "idx", "srcc", "dst", "shape",
                 "stdata", "succ", "npred", "rtime", "rstate", "t", "pos", "vlat", "done", "tag", "nb", "drain")

    def __init__(self, text, kind, rd=(), wr=(), slots=1):
        self.text = text
        self.kind = kind
        self.rd = set(rd)
        self.wr = set(wr)
        self.deps = []
        self.waits = []
        self.slots = slots
        self.srcc = None
        self.dst = None
        self.shape = None
        self.stdata = set()
        self.vlat = 0
        self.done = None
        self.tag = ""
        self.nb = 0
        self.drain = False


def hazard(p, c):
    req = 0
    k = c.kind
    if p.kind in VALU_KINDS:
        vw = {r for r in p.wr if isinstance(r, int)}
        sw = p.wr - vw
        if vw & c.rd:
            if k in ("mfma", "perm"):
                req = max(req, 2)
            if k == "rfl":
                req = max(req, 1)
            if p.kind == "trans" and k in VALU_KINDS and k != "trans":
                req = max(req, 1)
            if p.kind == "trans" and k in MEM_KINDS:
                req = max(req, 1)
        if sw & c.rd:
            if k in VALU_KINDS or k == "salu":
                req = max(req, 2)
            if k in MEM_KINDS:
                req = max(req, 5)
    if p.kind == "mfma":
        if k == "mfma":
            cs = rng(*c.srcc) if c.srcc else set()
            if p.wr & (c.rd - cs):
                req = max(req, 8)
            if p.wr & cs and (c.srcc != p.dst or c.shape != p.shape):
                req = max(req, 6)
            if p.wr & c.wr and (c.dst != p.dst or c.srcc != p.dst):
                req = max(req, 6)
        elif k in VALU_KINDS or k in MEM_KINDS:
            if p.wr & (c.rd | c.wr):
                req = max(req, 8)
            if k in VALU_KINDS and p.srcc and (rng(*p.srcc) & c.wr):
                req = max(req, 3)
    if p.kind == "salu" and "m0" in p.wr and k == "dma":
        req = max(req, 1)
    if p.kind == "vst" and (p.stdata & c.wr):
        req = max(req, 2)
    return req


class Prog:
    def __init__(self):
        self.ins = []
        self.pri = 0
        self.tag = ""
        self.lastbar = None

    def add(self, i, deps=(), waits=()):
        i.idx = len(self.ins)
        i.pri = (self.pri, i.idx)
        i.tag = self.tag
        for d in deps:
            if d is None:
                continue
            i.deps.append(d if isinstance(d, tuple) else (d, 0))
        i.waits = [w for w in waits if w is not None]
        self.ins.append(i)
        return i

    @staticmethod
    def _op(x, rd):
        if isinstance(x, int):
            rd.add(x)
            return R(x)
        if isinstance(x, tuple):
            if x[0] == "c":
                v = x[1]
                if isinstance(v, float):
                    return repr(v)
                return hex(v & 0xFFFFFFFF) if v > 64 or v < -16 else str(v)
            if x[0] == "neg":
                rd.add(x[1])
                return f"-{R(x[1])}"
            raise ValueError(x)
        if isinstance(x, str):
            rd.update(Prog.sregs(x))
            return x
        raise ValueError(x)

    @staticmethod
    def sregs(x):
        if x.startswith("s["):
            a, b = x[2:-1].split(":")
            return {f"s{i}" for i in range(int(a), int(b) + 1)}
        return {x}

    def valu(self, op, dst, *srcs, kind="valu", **kw):
        rd = set()
        ops = [self._op(s, rd) for s in srcs]
        return self.add(I(f"{op} {R(dst)}, " + ", ".join(ops), kind, rd, {dst}, 2 if kind == "trans" else 1), **kw)

    def trans(self, op, dst, src, **kw):
        return self.valu(op, dst, src, kind="trans", **kw)

    def cmp(self, op, a, b, dst="vcc"):
        rd = set()
        oa, ob = self._op(a, rd), self._op(b, rd)
        return self.add(I(f"{op} {dst}, {oa}, {ob}", "valu", rd, self.sregs(dst)))

    def cndmask(self, dst, f, t, mask="vcc"):
        rd = set(self.sregs(mask))
        of, ot = self._op(f, rd), self._op(t, rd)
        return self.add(I(f"v_cndmask_b32 {R(dst)}, {of}, {ot}, {mask}", "valu", rd, {dst}))

    def rfl(self, sdst, v):
        return self.add(I(f"v_readfirstlane_b32 {sdst}, {R(v)}", "rfl", {v}, {sdst}))

    def perm(self, which, a, b):
        return self.add(I(f"v_permlane{which}_swap_b32 {R(a)}, {R(b)}", "perm", {a, b}, {a, b}, 2))

    def salu(self, op, dst, *srcs, **kw):
        rd = set()
        ops = []
        for s in srcs:
            if isinstance(s, int):
                ops.append(hex(s & 0xFFFFFFFF) if (s > 64 or s < -16) else str(s))
            else:
                ops.append(s)
                rd.update(self.sregs(s))
        wr = set(self.sregs(dst)) if dst else set()
        assert not op.startswith(("s_cselect", "s_cmov", "s_addc", "s_cmp")), "use sel()"
        return self.add(I(f"{op} " + ", ".join(([dst] if dst else []) + ops), "salu", rd, wr), **kw)

    def sel(self, a, b, items):
        rd, wr = set(), set()

        def o(x):
            if isinstance(x, int):
                return hex(x & 0xFFFFFFFF) if (x > 64 or x < -16) else str(x)
            rd.add(x)
            return x

        lines = [f"s_cmp_eq_u32 {o(a)}, {o(b)}"]
        for dst, t, f in items:
            wr.add(dst)
            if f is None:
                rd.add(dst)
                lines.append(f"s_cmov_b32 {dst}, {o(t)}")
            else:
                lines.append(f"s_cselect_b32 {dst}, {o(t)}, {o(f)}")
        return self.add(I("\n".join(lines), "salu", rd, wr, len(lines)))

    def mfma(self, d, a, b, c, k32=True, **kw):
        na = 4 if k32 else 2
        op = "v_mfma_f32_16x16x32_bf16" if k32 else "v_mfma_f32_16x16x16_bf16"
        rd = rng(a, na) | rng(b, na)
        if c is not None:
            rd |= rng(c, 4)
        cs = R(c, 4) if c is not None else "0"
        i = I(f"{op} {R(d, 4)}, {R(a, na)}, {R(b, na)}, {cs}", "mfma", rd, rng(d, 4), 2)
        i.srcc = (c, 4) if c is not None else None
        i.dst = (d, 4)
        i.shape = k32
        return self.add(i, **kw)

    def dsr(self, op, dst, n, addr, off=0, **kw):
        assert 0 <= off < 65536, off
        o = f" offset:{off}" if off else ""
        return self.add(I(f"{op} {R(dst, n)}, {R(addr)}{o}", "dsr", {addr}, rng(dst, n)), **kw)

    def dsw(self, op, addr, src, n, off=0, **kw):
        assert 0 <= off < 65536, off
        o = f" offset:{off}" if off else ""
        return self.add(I(f"{op} {R(addr)}, {R(src, n)}{o}", "dsw", {addr} | rng(src, n), (), n + 1), **kw)

    def _srd(self, srd, soff):
        s = {f"s{srd + i}" for i in range(4)}
        if soff != "0":
            s.add(soff)
        return s

    def vld(self, op, dst, n, voff, srd, soff="0", off=0, lat=2000, **kw):
        o = f" offset:{off}" if off else ""
        i = I(f"{op} {R(dst, n)}, {R(voff)}, {SR(srd, 4)}, {soff} offen{o}", "vld", {voff} | self._srd(srd, soff),
              rng(dst, n), 2)
        i.vlat = lat
        return self.add(i, **kw)

    def vst(self, op, src, n, voff, srd, soff="0", off=0, flags="", **kw):
        o = f" offset:{off}" if off else ""
        i = I(f"{op} {R(src, n)}, {R(voff)}, {SR(srd, 4)}, {soff} offen{o}{flags}", "vst",
              {voff} | rng(src, n) | self._srd(srd, soff), (), n + 1)
        i.stdata = rng(src, n) if n >= 3 else set()
        i.vlat = 1000
        return self.add(i, **kw)

    def dma(self, voff, srd, soff, lat=1500, flags="", **kw):
        i = I(f"buffer_load_dwordx4 {R(voff)}, {SR(srd, 4)}, {soff} offen lds{flags}", "dma",
              {voff, "m0"} | self._srd(srd, soff), (), 2)
        i.vlat = lat
        return self.add(i, **kw)

    def bar(self, deps=(), waits=()):
        b = self.add(I("s_barrier", "bar"), deps=list(deps) + [self.lastbar], waits=waits)
        self.lastbar = b
        return b

    def raw(self, text, kind="salu", rd=(), wr=(), slots=1, **kw):
        return self.add(I(text, kind, rd, wr, slots), **kw)

    def build(self):
        lastw = {}
        readers = {}
        for i in self.ins:
            i.succ = []
            i.npred = 0
            i.rtime = i.nb
            i.rstate = 0
        for c in self.ins:
            preds = {}

            def edge(p, lat):
                if p is c:
                    return
                preds[p] = max(preds.get(p, 0), lat)

            for r in c.rd:
                p = lastw.get(r)
                if p is not None:
                    edge(p, -1 if p.kind in ("dsr", "vld") else 0)
            for r in c.wr:
                p = lastw.get(r)
                if p is not None:
                    edge(p, -1 if p.kind in ("dsr", "vld") else 0)
                for p in readers.get(r, ()):
                    edge(p, 0)
            memdone = set()
            for r in c.rd | c.wr:
                p = lastw.get(r)
                if p is not None and p.kind in ("dsr", "vld"):
                    memdone.add(p)
            for w in c.waits:
                edge(w, 0)
                memdone.add(w)
            for p, lat in c.deps:
                edge(p, lat)
            for p, lat in preds.items():
                p.succ.append((c, max(lat, 0), hazard(p, c), p in memdone))
                c.npred += 1
            c.waits = list(memdone)
            for r in c.rd:
                readers.setdefault(r, []).append(c)
            for r in c.wr:
                lastw[r] = c
                readers[r] = []

    def schedule(self, dma_gap=88, max_vm=12, ta_slack=192, verbose=False):
        self.build()
        ready = [i for i in self.ins if i.npred == 0]
        out = []
        st = {"t": 0, "pipe": 0, "pos": 0, "vmdone": 0, "last": None, "ta": 0}
        vmq = []
        stats = {"mfma_idle": 0, "empty": 0}

        def issue(i, t, cost):
            i.t = t
            i.pos = st["pos"]
            st["pos"] += 1
            out.append(i)
            ready.remove(i)
            if i.kind in VM_KINDS:
                i.done = max(t + i.vlat, st["vmdone"] + (dma_gap if i.kind == "dma" else 16))
                st["vmdone"] = i.done
                vmq.append(i.done)
                st["ta"] = max(st["ta"], t) + 64
            elif i.kind in LDS_KINDS:
                i.done = t + LAT_LDS
            for c, lat, hz, md in i.succ:
                rt = t + lat
                if md:
                    rt = max(rt, i.done + 16)
                c.rtime = max(c.rtime, rt)
                c.rstate = max(c.rstate, i.pos + 1 + hz)
                c.npred -= 1
                if c.npred == 0:
                    ready.append(c)
            st["t"] = t + cost
            st["last"] = i.kind

        def ok(i, t):
            if i.rtime > t or i.rstate > st["pos"]:
                return False
            if i.kind in VM_KINDS:
                if i.pri[0] > -3 and sum(1 for d in vmq[-max_vm:] if d > t) >= max_vm:
                    return False
                if st["ta"] - t > ta_slack:
                    return False
            return True

        def best(pred):
            b = None
            for i in ready:
                if pred(i) and (b is None or i.pri < b.pri):
                    b = i
            return b

        n = len(self.ins)
        while len(out) < n:
            t = st["t"]
            pipe = st["pipe"]
            if t >= pipe:
                m = best(lambda i: i.kind == "mfma" and ok(i, t))
                if m is not None:
                    if out and stats.get("started"):
                        stats["mfma_idle"] += t - pipe
                    stats["started"] = True
                    issue(m, t, 4)
                    st["pipe"] = t + 16
                    s = best(lambda i: i.kind in SCALAR_KINDS and ok(i, t + 4))
                    st["t"] = t + 8
                    if s is not None:
                        issue(s, t + 4, 4 * s.slots)
                    continue
            room = pipe - t
            pend = any(i.kind == "mfma" and i.rtime <= max(pipe, t) for i in ready)
            lastv = st["last"] in VALU_KINDS

            def fits(i):
                if i.kind == "mfma" or not ok(i, t):
                    return False
                if not pend or room <= 0:
                    return True
                if i.kind in SCALAR_KINDS:
                    return False
                if lastv and i.kind in MEM_KINDS:
                    return False
                return i.slots * 4 <= room or (room >= 8 and i.slots > 2)

            f = best(fits)
            if f is not None and pend and room >= 8 and f.kind in VALU_KINDS and f.slots == 1:
                second = best(lambda i: i is not f and i.kind != "mfma" and i.kind not in SCALAR_KINDS
                              and i.slots == 1 and ok(i, t))
                if second is not None and second.kind in MEM_KINDS:
                    f = second
            if f is None and pend and room > 0:
                f = best(lambda i: i.kind in SCALAR_KINDS and ok(i, t))
            if f is not None:
                pen = 8 if (lastv and f.kind in MEM_KINDS) else 0
                issue(f, t + pen, 4 * f.slots)
                continue
            if room > 0:
                stats["empty"] += room
                st["t"] = pipe
                st["last"] = None
                continue
            cand = [i for i in ready if i.rtime <= t and i.rstate > st["pos"]]
            if cand:
                b = min(cand, key=lambda i: i.rstate)
                k = b.rstate - st["pos"]
                nop = I(f"s_nop {k - 1}", "nop")
                nop.t = t
                nop.pos = st["pos"]
                nop.slots = k
                nop.waits = []
                out.append(nop)
                n += 1
                st["pos"] += k
                st["t"] = t + 4 * k
                st["last"] = None
                continue
            nxt = min([i.rtime for i in ready if i.rtime > t] + [d for d in vmq[-max_vm:] if d > t]
                      + [x for x in (st["ta"] - ta_slack,) if x > t])
            st["t"] = nxt
            st["last"] = None
        self.order = out
        self.total = st["t"]
        self.stats = stats
        return out

    def emit(self, annotate=False):
        order = self.order
        n = len(order)
        lseq, vseq = {}, {}
        lcount = [0] * (n + 1)
        vcount = [0] * (n + 1)
        for k, i in enumerate(order):
            lcount[k + 1] = lcount[k]
            vcount[k + 1] = vcount[k]
            if i.kind in LDS_KINDS:
                lseq[i] = lcount[k]
                lcount[k + 1] += 1
            if i.kind in VM_KINDS:
                vseq[i] = vcount[k]
                vcount[k + 1] += 1
        where = {i: k for k, i in enumerate(order)}
        ins_wait = {}
        ldone = vdone = 0
        nfree = npaid = 0
        lastm = -1
        for k, i in enumerate(order):
            needl = max([lseq[w] + 1 for w in i.waits if w in lseq], default=0)
            needv = max([vseq[w] + 1 for w in i.waits if w in vseq], default=0)
            if needl > ldone or needv > vdone:
                newest = max(where[w] for w in i.waits
                             if (w in lseq and lseq[w] >= ldone) or (w in vseq and vseq[w] >= vdone))
                pos = None
                j = k - 1
                back = 0
                while j > newest and back < 2:
                    if order[j].kind == "mfma":
                        back += 1
                        if (j + 1) in ins_wait:
                            pos = j + 1
                            break
                        if order[j + 1].kind not in SCALAR_KINDS + ("nop",):
                            pos = j + 1
                            break
                    j -= 1
                if pos is None:
                    pos = k
                    if pos not in ins_wait:
                        npaid += 1
                else:
                    nfree += 1
                w = ins_wait.setdefault(pos, [0, 0])
                if needl > ldone:
                    tt = order[pos - 1].t if pos else 0
                    for q in range(pos - 1, -1, -1):
                        o = order[q]
                        if o in lseq:
                            if lseq[o] < needl:
                                break
                            if o.done + 32 <= tt:
                                needl = lseq[o] + 1
                                break
                    needl = max(needl, lcount[pos] - 15)
                    w[0] = max(w[0], needl)
                    ldone = max(ldone, needl)
                if needv > vdone:
                    needv = max(needv, vcount[pos] - 63)
                    w[1] = max(w[1], needv)
                    vdone = max(vdone, needv)
            if i.drain:
                ldone = lcount[k + 1]
        lines = []
        hist = []
        nn = 0
        for k, i in enumerate(order):
            if k in ins_wait:
                lg, vm = ins_wait[k]
                parts = []
                if vm:
                    parts.append(f"vmcnt({vcount[k] - vm})")
                if lg:
                    parts.append(f"lgkmcnt({lcount[k] - lg})")
                lines.append("    s_waitcnt " + " ".join(parts))
                hist.append((None, 1))
            need = 0
            dist = 0
            for p, ws in reversed(hist):
                if p is not None:
                    need = max(need, hazard(p, i) - dist)
                dist += ws
                if dist >= 10:
                    break
            if need > 0:
                lines.append(f"    s_nop {need - 1}")
                hist.append((None, need))
                nn += 1
            txt = i.text
            if annotate:
                txt = f"{txt:<90} ; t={i.t} {i.tag}"
            for l in txt.split("\n"):
                lines.append("    " + l)
            hist.append((i if i.kind != "nop" else None, i.slots if i.kind == "nop" else 1))
            if len(hist) > 16:
                hist.pop(0)
        self.estats = {"free_waits": nfree, "paid_waits": npaid, "late_nops": nn}
        return "\n".join(lines) + "\n"
```

```python
import math
import os
import struct
import sys

sys.path.insert(0, os.path.dirname(os.path.abspath(__file__)))
from sched import Prog, I, R, C, rng

NAME = "standalone__neighborhood_dinat__vision"
ENV = os.environ.get

XROW = 7744
XB = 0
EB = 8 * XROW
EROW = 320
EHEAD = 11 * EROW
OB = EB + 4 * EHEAD
WB = OB + 12288
LDS_TOTAL = WB + 4 * 18432
RSTR = 172032

S_X, S_W, S_WO, S_RPB, S_OUT = 4, 8, 12, 16, 20
S_TH, S_TW, S_WAVE, S_C, S_PIX, S_XB, S_320 = "s34", "s35", "s36", "s37", "s38", "s39", "s40"
S_M0 = ["s41", "s42"]
S_XR = {0: "s43", 1: "s44", 2: "s45", 17: "s46", 18: "s47", 19: "s48"}
S_WCOL, S_WLDS, S_OB = "s49", "s50", "s51"
S_T = ["s52", "s53", "s54", "s55"]
S_XO = "s56"
S_WOFF = "s57"
S_SO = ["s58", "s59"]
S_CODE0 = 60
STAMP0 = 24

K0 = 0
V0 = 66
Q0 = 132
SQ = [144 + 4 * i for i in range(8)]
PQ = [176, 180]
OQ = 184
ACC = [200 + 4 * i for i in range(6)]
XA, XQ, XQW, XC = 224, 225, 226, 227
ELA, ELB, ERB, ERC, SH2, SHC = 228, 229, 230, 231, 232, 233
ET = [234, 235, 236]
OW4, OW2, ORD, WOP, WOC = 237, 238, 239, 240, 241
STL4, STL2, STR4, STR2 = 242, 243, 244, 245
XD = [246, 247]
M0, M1, MT = 248, 249, 250
WD = [251, 252, 253]
WT = [254, 255]
A = 256
WK, WV, WQ = A + 0, A + 72, A + 144
ONES = A + 216
RING = [A + 220 + 4 * i for i in range(9)]


def f32bits(x):
    return struct.unpack("<I", struct.pack("<f", x))[0]


NEG = f32bits(-1e30)


def kreg(t):
    k, n = t
    return K0 + 6 * {"A": n % 4, "B": 4 + n % 4, "C": 8 + n % 3}[k]


def vreg(t, td):
    k, n = t
    if k == "C":
        o = 16 + 2 * (n % 3)
    else:
        o = 8 * ((n >> 1) & 1) + {("A", 0): 0, ("B", 0): 2, ("B", 1): 4, ("A", 1): 6}[(k, n & 1)]
    return V0 + 22 * td + o


def block_groups(side, s):
    if side == "L":
        return [sorted([("A", p), ("B", p)], key=lambda t: vreg(t, 0)) for p in range(s, s + 4)]
    bs = [("B", p) for p in range(s, s + 4)]
    g1 = sorted([t for t in bs if ((t[1] >> 1) & 1) == ((s >> 1) & 1)], key=lambda t: vreg(t, 0))
    g2 = sorted([t for t in bs if ((t[1] >> 1) & 1) != ((s >> 1) & 1)], key=lambda t: vreg(t, 0))
    cs = [("C", m) for m in range(s // 2, (2 * s + 7) // 4 + 1)]
    groups = [g1, g2]
    best = None
    for i in range(len(cs)):
        for j in range(i + 1, len(cs)):
            if abs(vreg(cs[i], 0) - vreg(cs[j], 0)) == 2 and (best is None):
                best = (i, j)
    if best is None:
        groups += [[t] for t in cs]
    else:
        pair = sorted([cs[best[0]], cs[best[1]]], key=lambda t: vreg(t, 0))
        rest = [[t] for k, t in enumerate(cs) if k not in best]
        newest = cs[-1]
        if newest in pair:
            groups += rest + [pair]
        else:
            groups += [pair] + rest
    return groups


def rowidx(thc, br, qr, slot):
    act = slot
    if thc == 0 and slot < 2:
        if br != 0:
            return 7
        act = slot + 8
    if thc == 2 and slot >= 18:
        if br != 6:
            return 7
        act = slot - 8
    sr = max(qr, 3) if thc == 0 else (min(qr, 10) if thc == 2 else qr)
    if not (sr <= act <= sr + 6):
        return 7
    rr = act - qr + 3
    if 3 <= rr <= 9:
        return rr - 3
    return rr - 2 if thc == 0 else rr + 8


def code_of(thc, br, kind, n):
    v = 0
    if kind == "C":
        for qh in range(2):
            for g in range(4):
                v |= rowidx(thc, br, 2 * br + qh, 4 * n + g) << (4 * (4 * qh + g))
    else:
        for qh in range(2):
            for gh in range(2):
                v |= rowidx(thc, br, 2 * br + qh, 2 * n + gh) << (4 * (2 * qh + gh))
    return v


class Pool:
    def __init__(self, regs):
        self.regs = regs
        self.k = 0

    def get(self):
        r = self.regs[self.k % len(self.regs)]
        self.k += 1
        return r


def gen():
    p = Prog()
    PROF = ENV("PROF")
    STFLAGS = ENV("STFLAGS", " sc0 sc1")
    ring, accp, sp, pp, etp = Pool(RING), Pool(ACC), Pool(SQ), Pool(PQ), Pool(ET)
    stamps = []

    def stamp(name, deps):
        if not PROF:
            return
        k = len(stamps)
        stamps.append(name)
        i = p.raw(f"s_memtime s[100:101]\ns_waitcnt lgkmcnt(0)\nv_writelane_b32 {R(A + 255 - 256 + 0) if False else 'v255'}, s100, {k}"
                  if False else f"s_memtime s[100:101]\ns_waitcnt lgkmcnt(0)\ns_mov_b32 s{STAMPS[k]}, s100",
                  "salu", (), {"s100", "s101", f"s{STAMPS[k]}"}, deps=deps)
        i.drain = True
        return i

    STAMPS = [3] + list(range(86, 100))

    p.tag = "pro"
    p.pri = -3
    stamp("start", [])
    LAT_W = int(ENV("LATW", 800))
    LAT_X = int(ENV("LATX", 1300))
    ld = p.raw("s_load_dwordx4 s[24:27], s[0:1], 0\ns_load_dwordx4 s[28:31], s[0:1], 16\ns_load_dwordx2 s[32:33], s[0:1], 32",
               "salu", (), {"kload"}, slots=3)
    T0, T1, T2, T3 = S_T
    LANE, G, C8, RB, DUMMY, PFO = OQ, OQ + 1, OQ + 2, OQ + 3, OQ + 4, OQ + 5
    TA = list(range(74, 82))
    TB = list(range(96, 104))
    TC = list(range(118, 126))
    TD = list(range(60, 66))
    TE = list(range(OQ + 8, OQ + 16))
    if not ENV("NOPF"):
        p.raw("s_getpc_b64 s[12:13]\ns_and_b32 s13, s13, 0xffff\ns_mov_b32 s14, L_end-L_go-64\ns_mov_b32 s15, 0x20000",
              "salu", (), {"s12", "s13", "s14", "s15"}, slots=4)
        p.valu("v_lshlrev_b32", PFO, C(7), 0)
        p.salu("s_mov_b32", T0, 32768)
        p.vld("buffer_load_dword", DUMMY, 1, PFO, 12, lat=LAT_X).wr = set()
        p.vld("buffer_load_dword", DUMMY, 1, PFO, 12, soff=T0, lat=LAT_X).wr = set()
    p.valu("v_lshrrev_b32", TA[0], C(6), 0)
    p.valu("v_and_b32", LANE, C(63), 0)
    p.rfl(S_WAVE, TA[0])
    p.salu("s_lshr_b32", T1, "s2", 3)
    p.salu("s_and_b32", T2, "s2", 1)
    p.salu("s_lshl_b32", T2, T2, 2)
    p.salu("s_lshr_b32", T3, T1, 3)
    p.salu("s_or_b32", S_TH, T2, T3)
    p.salu("s_and_b32", S_TW, T1, 7)
    p.salu("s_bfe_u32", T2, "s2", 0x10002)
    p.salu("s_mul_i32", T2, T2, 86016)
    p.salu("s_bfe_u32", T3, "s2", 0x10001)
    p.salu("s_mul_i32", T3, T3, 384)
    p.salu("s_add_u32", S_PIX, T2, T3)

    def wdma_offsets(pitch, t):
        for j in range(3):
            p.valu("v_add_u32", t[0], C(64 * j), LANE)
            p.valu("v_mul_u32_u24", t[1], C(10923), t[0])
            p.valu("v_lshrrev_b32", t[1], C(16), t[1])
            p.valu("v_mul_u32_u24", t[2], C(6), t[1])
            p.valu("v_sub_u32", t[0], t[0], t[2])
            p.valu("v_lshrrev_b32", t[2], C(1), t[1])
            p.valu("v_and_b32", t[2], C(4), t[2])
            p.valu("v_xor_b32", t[1], t[1], t[2])
            p.valu("v_mul_u32_u24", t[1], C(pitch), t[1])
            p.valu("v_lshl_add_u32", WD[j], t[0], C(4), t[1])

    p.salu("s_lshl_b32", S_M0[0], S_WAVE, 10)
    p.salu("s_add_u32", S_M0[1], S_M0[0], 4096)
    p.salu("s_min_u32", S_M0[1], S_M0[1], 416 * 16)
    p.salu("s_mul_i32", T2, S_TW, 14)
    p.salu("s_sub_u32", T2, T2, 3)
    t0, t1, t2 = TA[:3]
    for j in range(2):
        p.salu("s_lshr_b32", T3, S_M0[j], 4)
        p.valu("v_add_u32", t0, T3, LANE)
        p.valu("v_mul_u32_u24", t1, C(2731), t0)
        p.valu("v_lshrrev_b32", t1, C(16), t1)
        p.valu("v_mul_u32_u24", t2, C(24), t1)
        p.valu("v_sub_u32", t0, t0, t2)
        p.valu("v_and_b32", t2, C(2), t1)
        p.valu("v_xor_b32", t0, t0, t2)
        p.valu("v_add_u32", t1, T2, t1)
        p.valu("v_max_i32", t1, C(0), t1)
        p.valu("v_min_i32", t1, C(111), t1)
        p.valu("v_mul_u32_u24", t1, C(768), t1)
        p.valu("v_lshl_add_u32", XD[j], t0, C(4), t1)
    p.salu("s_mul_i32", S_OB, S_TH, 14 * RSTR)
    p.salu("s_add_u32", S_OB, S_OB, S_PIX)
    p.salu("s_sub_u32", S_XB, S_OB, 3 * RSTR)
    p.sel(S_TH, 0, [(S_XR[0], 8, 0), (S_XR[1], 9, 1), (S_XR[2], 3, 2)])
    for r in range(3):
        p.salu("s_mul_i32", S_XR[r], S_XR[r], RSTR)
        p.salu("s_add_u32", S_XR[r], S_XR[r], S_XB)
    wdma_offsets(1152, TA)
    p.salu("s_mul_i32", S_WCOL, S_WAVE, 96)
    p.salu("s_mul_i32", S_WLDS, S_WAVE, 18432)
    p.salu("s_add_u32", S_WLDS, S_WLDS, WB)
    p.salu("s_mul_i32", T2, T1, 37)
    p.salu("s_lshr_b32", T2, T2, 8)
    p.salu("s_mul_i32", T2, T2, 7)
    p.salu("s_sub_u32", T2, T1, T2)
    p.salu("s_lshl_b32", T2, T2, 15)
    p.salu("s_and_b32", T3, T1, 3)
    p.salu("s_lshl_b32", T3, T3, 15)
    kw = p.raw("s_waitcnt lgkmcnt(0)", "salu", {"kload"}, {f"s{i}" for i in range(24, 34)}, deps=[(ld, 500)])
    kw.drain = True

    def mksrd(srd, q, size):
        p.salu("s_mov_b32", f"s{srd}", f"s{q}")
        p.salu("s_and_b32", f"s{srd + 1}", f"s{q + 1}", 0xFFFF)
        p.salu("s_mov_b32", f"s{srd + 2}", size)
        p.salu("s_mov_b32", f"s{srd + 3}", 0x00020000)

    slot_busy = [[] for _ in range(6)]

    def wchunk(srd, pitch, colbyte, c, lat=LAT_W):
        p.salu("s_add_u32", S_WOFF, S_WCOL, colbyte + c * 32 * pitch)
        ds = []
        for j in range(3):
            p.salu("s_add_u32", "m0", S_WLDS, c * 3072 + 1024 * j)
            ds.append(p.dma(WD[j], srd, S_WOFF, lat=lat, waits=slot_busy[c]))
        slot_busy[c] = []
        return ds

    def wread(dst, c, ds):
        for ct in range(3):
            for half in range(2):
                r = p.dsr("ds_read_b64_tr_b16", dst + 4 * (3 * c + ct) + 2 * half, 2, WT[half], off=c * 3072 + ct * 32,
                          waits=ds)
                slot_busy[c].append(r)

    xdma = {}

    def xpair(pr, deps=()):
        ds = []
        for r in (2 * pr, 2 * pr + 1):
            if r in S_XR:
                so = S_XR[r]
            else:
                so = S_XO
                p.salu("s_add_u32", S_XO, S_XB, r * RSTR)
            for j in range(2):
                p.salu("s_add_u32", "m0", S_M0[j], XB + (r & 7) * XROW)
                ds.append(p.dma(XD[j], S_X, so, lat=LAT_X, deps=deps))
        xdma[pr] = ds

    mksrd(S_W, 26, 221184)
    if not ENV("NOPF"):
        p.vld("buffer_load_dword", DUMMY, 1, PFO, S_W, soff=T2, lat=LAT_X).wr = set()
    mksrd(S_X, 24, 19267584)
    xpair(0)
    mksrd(S_WO, 28, 73728)
    mksrd(S_RPB, 30, 1352)
    if not ENV("NOPF"):
        p.vld("buffer_load_dword", DUMMY, 1, PFO, S_WO, soff=T3, lat=LAT_X).wr = set()
    p.salu("s_mul_i32", T0, S_WAVE, 338)
    p.valu("v_lshlrev_b32", PQ[1] + 3, C(1), LANE)
    for i in range(3):
        p.vld("buffer_load_ushort", PQ[1] + i, 1, PQ[1] + 3, S_RPB, soff=T0, off=128 * i, lat=LAT_X)
    wk_d = [wchunk(S_W, 1152, 384, c, lat=LAT_X if c < 2 else LAT_W) for c in range(6)]
    xpair(1)
    xpair(2)
    xpair(3)

    p.pri = -2
    mksrd(S_OUT, 32, 19267584)
    p.valu("v_lshrrev_b32", G, C(4), LANE)
    p.valu("v_and_b32", C8, C(7), LANE)
    p.valu("v_bfe_u32", RB, LANE, C(3), C(1))
    t0, t1, t2, t3, t4, t5 = TB[:6]
    U0, U1, U2, U3 = "s24", "s25", "s26", "s27"
    p.valu("v_bfe_u32", t0, LANE, C(2), C(2))
    p.valu("v_and_b32", t1, C(3), LANE)
    p.valu("v_and_b32", t2, C(1), G)
    p.valu("v_lshl_add_u32", t3, G, C(3), t0)
    for half in range(2):
        p.valu("v_xor_b32", t4, C(half), t2)
        p.valu("v_lshl_add_u32", t4, t4, C(2), t3)
        p.valu("v_mul_u32_u24", t4, C(96), t4)
        p.valu("v_lshl_add_u32", t4, t1, C(3), t4)
        p.valu("v_add_u32", WT[half], S_WLDS, t4)
    p.valu("v_lshl_add_u32", t3, G, C(2), t0)
    p.valu("v_lshrrev_b32", t4, C(1), G)
    p.valu("v_lshlrev_b32", t4, C(2), t4)
    p.valu("v_xor_b32", t3, t3, t4)
    p.valu("v_mul_u32_u24", t3, C(96), t3)
    p.valu("v_add_u32", t3, S_WLDS, t3)
    p.salu("s_and_b32", U0, S_WAVE, 1)
    p.salu("s_lshl_b32", U1, U0, 5)
    p.salu("s_lshl_b32", U2, U0, 6)
    p.salu("s_sub_u32", U2, 64, U2)
    p.valu("v_lshl_add_u32", t4, t1, C(4), t3)
    p.valu("v_add_u32", WOP, U1, t4)
    p.valu("v_lshl_add_u32", t4, t1, C(3), t3)
    p.valu("v_add_u32", WOC, U2, t4)
    p.valu("v_mul_u32_u24", t0, C(XROW), t0)
    p.valu("v_add_u32", t1, C(16), t1)
    p.valu("v_mul_u32_u24", t1, C(384), t1)
    p.valu("v_and_b32", t2, C(2), LANE)
    p.valu("v_xor_b32", t2, t2, G)
    p.valu("v_lshlrev_b32", t2, C(4), t2)
    p.valu("v_add3_u32", XC, t0, t1, t2)
    p.valu("v_mul_u32_u24", t3, C(XROW), RB)
    for dst, co in ((XA, 0), (XQ, 3)):
        p.valu("v_add_u32", t0, C(co), C8)
        p.valu("v_and_b32", t1, C(2), t0)
        p.valu("v_xor_b32", t1, t1, G)
        p.valu("v_mul_u32_u24", t0, C(384), t0)
        p.valu("v_lshl_add_u32", t0, t1, C(4), t0)
        p.valu("v_add_u32", dst, t0, t3)
    p.valu("v_xor_b32", t1, C(1), RB)
    p.valu("v_mul_u32_u24", t1, C(7 * XROW), t1)
    p.valu("v_add_u32", XQW, t0, t1)

    p.pri = 2
    p.tag = "set"
    p.valu("v_mul_u32_u24", t3, C(RSTR), RB)
    p.valu("v_mul_u32_u24", t4, C(768), C8)
    p.valu("v_add3_u32", t3, t3, t4, S_WCOL)
    p.valu("v_lshl_add_u32", t4, G, C(4), t3)
    p.valu("v_add_u32", STL4, U1, t4)
    p.valu("v_lshl_add_u32", t4, G, C(3), t3)
    p.valu("v_add_u32", STL2, U2, t4)
    p.valu("v_bfrev_b32", t4, C(1))
    p.cmp("v_cmp_lt_u32", C(5), C8)
    p.cndmask(STR4, STL4, t4)
    p.cndmask(STR2, STL2, t4)
    p.salu("s_mul_i32", U3, S_TW, 14 * 768)
    p.salu("s_add_u32", S_OB, S_OB, U3)
    p.salu("s_lshr_b32", U1, S_WAVE, 1)
    p.salu("s_mul_i32", U1, U1, 3072)
    p.salu("s_add_u32", U1, U1, OB)
    p.salu("s_lshl_b32", U2, U0, 11)
    p.salu("s_add_u32", U2, U2, U1)
    p.valu("v_lshl_add_u32", OW4, LANE, C(4), U2)
    p.salu("s_lshl_b32", U2, U0, 3)
    p.salu("s_add_u32", U2, U2, U1)
    p.salu("s_add_u32", U2, U2, 1024)
    p.valu("v_lshl_add_u32", OW2, LANE, C(4), U2)
    p.valu("v_lshlrev_b32", ORD, C(4), LANE)
    p.valu("v_add_u32", ORD, C(OB), ORD)
    p.salu("s_mov_b32", S_C, f32bits((48 ** -0.5) * math.log2(math.e)))
    p.salu("s_mov_b32", S_320, EROW)
    p.sel(S_TH, 7, [(S_XR[17], 16, 17), (S_XR[18], 10, 18), (S_XR[19], 11, 19)])
    for r in range(17, 20):
        p.salu("s_mul_i32", S_XR[r], S_XR[r], RSTR)
        p.salu("s_add_u32", S_XR[r], S_XR[r], S_XB)

    EV = SQ[0]
    EM = PQ[0]
    Z0, Z1, Z2, Z3, Z4, Z5 = "s28", "s29", "s30", "s31", "s32", "s33"
    p.sel(S_TH, 0, [(Z0, 2, -8)])
    p.sel(S_TW, 0, [(Z1, 3, 0), (Z2, -3, -2)])
    p.salu("s_lshl_b32", Z3, S_WAVE, 10)
    p.salu("s_add_u32", Z3, Z3, OB + 64)
    t0, t1, t2, t3, t4, t5 = TC[:6]
    for it in range(4):
        p.valu("v_add_u32", t0, C(64 * it), LANE)
        if it == 3:
            p.valu("v_min_u32", t0, C(219), t0)
        p.valu("v_mul_u32_u24", t1, C(3277), t0)
        p.valu("v_lshrrev_b32", t1, C(16), t1)
        p.valu("v_mul_u32_u24", t2, C(20), t1)
        p.valu("v_sub_u32", t0, t0, t2)
        p.valu("v_add_u32", t2, C(-11), t0)
        p.valu("v_max_i32", t2, C(0), t2)
        p.valu("v_mul_u32_u24", t3, C(11), t2)
        p.valu("v_lshrrev_b32", t3, C(5), t3)
        p.valu("v_mul_u32_u24", t4, C(3), t3)
        p.valu("v_sub_u32", t2, t2, t4)
        p.valu("v_lshlrev_b32", t2, C(2), t2)
        p.valu("v_sub_u32", t3, t2, t3)
        p.cmp("v_cmp_lt_u32", C(10), t0)
        p.valu("v_add_u32", t3, Z1, t3)
        p.valu("v_add_u32", t2, Z2, t2)
        p.valu("v_add_u32", t4, C(-3), t0)
        p.cndmask(t0, t0, t3)
        p.cndmask(EM + it, t4, t2)
        p.cmp("v_cmp_lt_u32", C(6), t1)
        p.valu("v_add_u32", t2, C(3), t1)
        p.valu("v_add_u32", t3, Z0, t1)
        p.cndmask(t2, t2, t3)
        p.cmp("v_cmp_eq_u32", C(7), t1)
        p.valu("v_mov_b32", t3, C(32))
        p.valu("v_mul_i32_i24", t2, C(13), t2)
        p.cndmask(EM + it, EM + it, t3)
        p.valu("v_add_u32", t0, t0, t2)
        p.valu("v_lshl_add_u32", SQ[4] + it, t0, C(2), Z3)

    t0, t1, t2, t3, t4, t5 = TD
    p.salu("s_mul_i32", Z4, S_WAVE, EHEAD)
    p.salu("s_add_u32", Z4, Z4, EB)
    p.sel(S_TW, 7, [(Z5, 3, 0)])
    p.valu("v_and_b32", t5, C(1), G)
    for dst, side, gadd in ((ELA, "L", 0), (ELB, "L", 2), (ERB, "R", 0), (ERC, "R", None)):
        if side == "L":
            p.valu("v_mov_b32", t0, C8)
        else:
            p.valu("v_min_u32", t0, C(5), C8)
        if gadd is None:
            p.valu("v_mov_b32", t1, C(2))
        else:
            p.valu("v_add_u32", t1, C(gadd), t5)
        p.cmp("v_cmp_eq_u32", C(3), t1)
        p.valu("v_lshlrev_b32", t2, C(2), t1)
        p.valu("v_sub_u32", t2, t2, t0)
        p.valu("v_add_u32", t2, C(3), t2)
        p.valu("v_min_u32", t2, C(10), t2)
        if side == "R":
            p.valu("v_add_u32", t0, C(-3), t0)
        p.valu("v_mul_u32_u24", t3, C(3), t0)
        p.valu("v_add3_u32", t3, t3, t1, C(11))
        p.valu("v_mov_b32", t4, C(10))
        p.cndmask(t3, t3, t4)
        p.cmp("v_cmp_gt_u32", Z1 if side == "L" else Z5, t0)
        p.cndmask(t2, t2, t3)
        p.valu("v_lshl_add_u32", dst, t2, C(4), Z4)
    p.valu("v_lshrrev_b32", t0, C(1), G)
    p.valu("v_lshl_add_u32", t0, RB, C(1), t0)
    p.valu("v_lshlrev_b32", SH2, C(2), t0)
    p.valu("v_lshl_add_u32", t0, RB, C(2), G)
    p.valu("v_lshlrev_b32", SHC, C(2), t0)
    p.valu("v_mov_b32", t0, C(0x3F803F80))
    for i in range(4):
        p.valu("v_accvgpr_write_b32", ONES + i, t0)
    codes = {}
    code_reg = {}

    def code(br, kind, n):
        k = "C" if kind == "C" else "P"
        key = tuple(code_of(thc, br, k, n) for thc in range(3))
        if key not in codes:
            sreg = f"s{S_CODE0 + len(codes)}"
            assert S_CODE0 + len(codes) < 86
            codes[key] = sreg
        return codes[key]

    for br in range(7):
        for side in "LR":
            for grp in block_groups(side, br):
                for t in grp:
                    code_reg[(br, t)] = code(br, t[0], t[1])
    for key, sreg in codes.items():
        p.salu("s_mov_b32", sreg, key[1])
    for thc, thv in ((0, 0), (2, 7)):
        p.sel(S_TH, thv, [(sreg, key[thc], None) for key, sreg in codes.items() if key[thc] != key[1]])
    ewr = []

    def ebuild():
        t0, t1, t2, t3, t4, t5 = TC[:6]
        p.salu("s_mov_b32", Z0, f32bits(math.sqrt(48.0)))
        p.valu("v_mov_b32", t5, C(NEG))
        p.valu("v_lshl_add_u32", t4, LANE, C(2), Z3)
        ws = []
        for i in range(3):
            v = PQ[1] + i
            p.valu("v_lshlrev_b32", v, C(16), v)
            p.valu("v_mul_f32", v, Z0, v)
            ws.append(p.dsw("ds_write_b32", t4, v, 1, off=256 * i))
        for it in range(4):
            for h in range(2):
                rd = p.dsr("ds_read2_b32", EV + 4 * it + 2 * h, 2, SQ[4] + it, deps=ws)
                rd.text += f" offset0:{2 * h} offset1:{2 * h + 1}"
        for it in range(4):
            for r in range(4):
                v = EV + 4 * it + r
                p.valu("v_add_u32", t0 + (r & 1) * 3, C(r), EM + it)
                p.cmp("v_cmp_gt_u32", C(7), t0 + (r & 1) * 3, dst=("vcc", "s[24:25]")[r & 1])
                p.cndmask(v, t5, v, mask=("vcc", "s[24:25]")[r & 1])
            p.valu("v_add_u32", t1, C(64 * it), LANE)
            if it == 3:
                p.valu("v_min_u32", t1, C(219), t1)
            p.valu("v_lshl_add_u32", t2, t1, C(4), Z4)
            ewr.append(p.dsw("ds_write_b128", t2, EV + 4 * it, 4))

    xbar = {}
    xuse = {}

    def xread(kind, n, ks):
        f = ring.get()
        if kind in "AB":
            addr, off, pairs = XA, ((2 * n) & 7) * XROW + (3072 if kind == "B" else 0), [n]
        elif kind == "C":
            addr, off, pairs = XC, ((4 * n) & 7) * XROW, [2 * n, 2 * n + 1]
        else:
            r = 2 * n + 3
            pairs = [n + 1, n + 2]
            addr, off = (XQW, 0) if (r & 7) == 7 else (XQ, (r & 7) * XROW)
            off += 3072 if kind == "R" else 0
        p.dsr("ds_read_b128", f, 4, addr, off=XB + off + 64 * ks, deps=[xbar[q] for q in pairs])
        return f, pairs

    def proj(what, t):
        p.tag = f"{what}_{t[0]}{t[1]}"
        accs = {(w, c): accp.get() for w in what for c in range(3)}
        last = None
        for ks in range(6):
            p.pri = 0
            f, pairs = xread(t[0], t[1], ks)
            p.pri = 1
            for w in what:
                for c in range(3):
                    a = accs[(w, c)]
                    wf = {"K": WK, "V": WV, "Q": WQ}[w] + 4 * (3 * ks + c)
                    if w == "V":
                        last = p.mfma(a, f, wf, a if ks else None)
                    else:
                        last = p.mfma(a, wf, f, a if ks else None)
        for q in pairs:
            xuse.setdefault(q, []).append(last)
        p.pri = 0
        for w in what:
            for c in range(3):
                a = accs[(w, c)]
                if w == "K":
                    d = kreg(t) + 2 * c
                elif w == "V":
                    d = vreg(t, c)
                else:
                    d = Q0 + (6 if t[0] == "R" else 0) + 2 * c
                p.valu("v_cvt_pk_bf16_f32", d, a, a + 1)
                p.valu("v_cvt_pk_bf16_f32", d + 1, a + 2, a + 3)
        return last

    squad = {}

    def s_part(side, s):
        p.tag = f"S_{side}{s}"
        q = Q0 + (6 if side == "R" else 0)
        tiles = [t for grp in block_groups(side, s) for t in grp]
        idxreg = {}
        for t in tiles:
            sq = sp.get()
            squad[(side, s, t)] = sq
            p.pri = 0
            base = {("L", "A"): ELA, ("L", "B"): ELB, ("R", "B"): ERB, ("R", "C"): ERC}[(side, t[0])]
            key = (t[0] == "C", t[1])
            if key not in idxreg:
                idxreg = {key: etp.get()}
                p.valu("v_bfe_u32", idxreg[key], code_reg[(s, t)], SHC if t[0] == "C" else SH2, C(4))
                first = side == "L"
            else:
                first = False
            ar = etp.get() if first else idxreg[key]
            p.valu("v_mad_u32_u24", ar, idxreg[key], S_320, base)
            p.dsr("ds_read_b128", sq, 4, ar, waits=ewr)
            p.mfma(sq, kreg(t), q, sq)
            last = p.mfma(sq, kreg(t) + 4, q + 4, sq, k32=False)
        return last

    def xpv(side, s):
        p.tag = f"X_{side}{s}"
        p.pri = 1
        groups = block_groups(side, s)
        tiles = [t for grp in groups for t in grp]
        vals = [squad[(side, s, t)] + r for t in tiles for r in range(4)]
        p.valu("v_max3_f32", M0, vals[0], vals[1], vals[2])
        p.valu("v_max3_f32", M1, vals[3], vals[4], vals[5])
        k = 6
        m = M0
        while k < len(vals):
            p.valu("v_max3_f32", m, m, vals[k], vals[k + 1])
            m = M1 if m == M0 else M0
            k += 2
        p.valu("v_max_f32", M0, M0, M1)
        p.valu("v_mov_b32", M1, M0)
        p.perm(16, M0, M1)
        p.valu("v_max_f32", M0, M0, M1)
        p.valu("v_mov_b32", M1, M0)
        p.perm(32, M0, M1)
        p.valu("v_max_f32", M0, M0, M1)
        p.valu("v_mul_f32", MT, S_C, M0)
        last = None
        for gi, grp in enumerate(groups):
            pq = pp.get()
            p.pri = 1
            p.tag = f"X_{side}{s}"
            for j, t in enumerate(grp):
                sq = squad[(side, s, t)]
                for r in range(4):
                    p.valu("v_fma_f32", sq + r, sq + r, S_C, ("neg", MT))
                for r in range(4):
                    p.trans("v_exp_f32", sq + r, sq + r)
                p.valu("v_cvt_pk_bf16_f32", pq + 2 * j, sq, sq + 1)
                p.valu("v_cvt_pk_bf16_f32", pq + 2 * j + 1, sq + 2, sq + 3)
            p.pri = 0
            p.tag = f"PV_{side}{s}"
            k32 = len(grp) == 2
            last = p.mfma(OQ + 12, ONES, pq, OQ + 12 if gi else None, k32=k32)
            for td in range(3):
                last = p.mfma(OQ + 4 * td, vreg(grp[0], td), pq, OQ + 4 * td if gi else None, k32=k32)
        return last

    owr = {}

    def epi(side, s, deps):
        p.tag = f"E_{side}{s}"
        p.pri = 0
        p.trans("v_rcp_f32", OQ + 13, OQ + 12)
        for i in range(6):
            p.valu("v_mul_f32", OQ + 2 * i, OQ + 2 * i, OQ + 13)
            p.valu("v_mul_f32", OQ + 2 * i + 1, OQ + 2 * i + 1, OQ + 13)
            p.valu("v_cvt_pk_bf16_f32", OQ + i, OQ + 2 * i, OQ + 2 * i + 1)
        off = 6144 if side == "R" else 0
        owr[(side, s)] = [p.dsw("ds_write_b128", OW4, OQ, 4, off=off, deps=deps),
                          p.dsw("ds_write_b64", OW2, OQ + 4, 2, off=off, deps=deps)]

    wo_d = []

    def outproj(s, bar):
        p.tag = f"OUT{s}"
        accs = [[accp.get() for m in range(3)] for b in range(2)]
        last = None
        for u in range(6):
            j, r = divmod(u, 3)
            b16 = [(6 * j, 6 * j + 1), (6 * j + 2, 6 * j + 5), (6 * j + 3, 6 * j + 4)][r]
            p.pri = 0
            of = []
            for b in range(2):
                f = ring.get()
                p.dsr("ds_read_b128", f, 4, ORD, off=6144 * b + 1024 * u, deps=[bar])
                of.append(f)
            for m in range(3):
                p.pri = 0
                wf = ring.get()
                for h in range(2):
                    p.dsr("ds_read_b64_tr_b16", wf + 2 * h, 2, WOC if m == 2 else WOP,
                          off=b16[h] * 1536 + (8 if m == 1 else 0), waits=wo_d)
                p.pri = 1
                for b in range(2):
                    a = accs[b][m]
                    last = p.mfma(a, wf, of[b], a if u else None)
        p.pri = 0
        for b in range(2):
            a0, a1, a2 = accs[b]
            p.salu("s_add_u32", S_SO[b], S_OB, 2 * s * RSTR + b * 8 * 768)
            p.valu("v_cvt_pk_bf16_f32", a0, a0, a0 + 1)
            p.valu("v_cvt_pk_bf16_f32", a0 + 1, a0 + 2, a0 + 3)
            p.valu("v_cvt_pk_bf16_f32", a0 + 2, a1, a1 + 1)
            p.valu("v_cvt_pk_bf16_f32", a0 + 3, a1 + 2, a1 + 3)
            p.vst("buffer_store_dwordx4", a0, 4, STR4 if b else STL4, S_OUT, S_SO[b], flags=STFLAGS)
            p.valu("v_cvt_pk_bf16_f32", a2, a2, a2 + 1)
            p.valu("v_cvt_pk_bf16_f32", a2 + 1, a2 + 2, a2 + 3)
            p.vst("buffer_store_dwordx2", a2, 2, STR2 if b else STL2, S_OUT, S_SO[b], flags=STFLAGS)
        return last

    p.tag = "wu"
    p.pri = 0
    wv_d, wq_d = [], []
    for c in range(6):
        wread(WK, c, wk_d[c])
    for c in range(6):
        wv_d.append(wchunk(S_W, 1152, 768, c))
    p.pri = 2
    ebuild()
    p.pri = 0
    xbar[0] = p.bar(waits=xdma[0])
    l = proj("K", ("A", 0))
    stamp("K_A0", [l])
    proj("K", ("B", 0))
    xbar[1] = p.bar(waits=xdma[1])
    proj("K", ("A", 1))
    proj("K", ("B", 1))
    proj("K", ("C", 0))
    xbar[2] = p.bar(waits=xdma[2])
    proj("K", ("A", 2))
    proj("K", ("B", 2))
    xbar[3] = p.bar(waits=xdma[3])
    p.tag = "wu"
    for c in range(6):
        wread(WV, c, wv_d[c])
        wq_d.append(wchunk(S_W, 1152, 0, c))
    proj("K", ("A", 3))
    proj("K", ("B", 3))
    l = proj("K", ("C", 1))
    stamp("K done", [l])
    for t in (("A", 0), ("B", 0), ("A", 1), ("B", 1), ("C", 0)):
        proj("V", t)
    p.tag = "wu"
    wdma_offsets(384, TE)
    for c in range(6):
        wread(WQ, c, wq_d[c])
        wo_d += wchunk(S_WO, 384, 0, c)
    proj("Q", ("L", 0))
    l = s_part("L", 0)
    stamp("S_L0", [l])

    for s in range(7):
        proj("Q", ("R", s))
        if s == 0:
            p.pri = 0
            b1 = p.bar(deps=xuse[0] + xuse[1])
            xpair(4, deps=[b1])
            xpair(5, deps=[b1])
            for t in (("A", 2), ("B", 2), ("A", 3), ("B", 3)):
                proj("V", t)
            proj("Q", ("L", 1))
            proj("V", ("C", 1))
            lo = None
        else:
            if s < 6:
                proj("Q", ("L", s + 1))
            p.pri = 0
            p.tag = f"B1_{s}"
            b1 = p.bar(deps=xuse.get(s + 1, []) if s + 5 < 10 else [],
                       waits=owr[("L", s - 1)] + owr[("R", s - 1)] + xdma.get(s + 4, []))
            stamp(f"B1_{s}", [b1])
            if s + 4 < 10:
                xbar[s + 4] = b1
            if s + 5 < 10:
                xpair(s + 5, deps=[b1])
            if s & 1:
                proj("KV", ("C", (s + 3) // 2))
            lo = outproj(s - 1, b1)
        xpv("L", s)
        s_part("R", s)
        p.pri = 0
        p.tag = f"B2_{s}"
        if s == 0:
            b2 = p.bar(waits=xdma[4])
            xbar[4] = b2
        else:
            b2 = p.bar(deps=[lo])
        epi("L", s, [b2])
        xpv("R", s)
        if s < 6:
            proj("KV", ("A", s + 4))
            proj("KV", ("B", s + 4))
            s_part("L", s + 1)
        epi("R", s, [b2])
    p.pri = 0
    b1 = p.bar(waits=owr[("L", 6)] + owr[("R", 6)])
    stamp("B1_7", [b1])
    outproj(6, b1)

    p.schedule(dma_gap=int(ENV("DMAGAP", 80)), max_vm=int(ENV("MAXVM", 14)))
    body = p.emit(annotate=bool(ENV("ANN")))
    cnt = {}
    slots = 0
    for i in p.order:
        cnt[i.kind] = cnt.get(i.kind, 0) + 1
        if i.kind not in ("mfma", "salu", "bar", "nop"):
            slots += i.slots
    sys.stderr.write(f"counts {cnt} vec-slots {slots} model-cycles {p.total} {p.stats} {p.estats} codes {len(codes)}\n")
    if ENV("TL"):
        seen = {}
        for i in p.order:
            if i.kind != "nop":
                seen.setdefault(i.tag, [i.t, i.t])[1] = i.t
        for k, v in seen.items():
            sys.stderr.write(f"{k:10s} {v[0]:6d} {v[1]:6d}\n")

    tailc = ""
    if PROF:
        k = len(stamps)
        stamps.append("end")
        tailc = f"""    s_waitcnt vmcnt(0)
    s_memtime s[100:101]
    s_load_dwordx2 s[8:9], s[0:1], 48
    s_waitcnt lgkmcnt(0)
    s_mov_b32 s{STAMPS[k]}, s100
    s_mov_b32 s4, s8
    s_and_b32 s5, s9, 0xffff
    s_mov_b32 s6, 0x1000000
    s_mov_b32 s7, 0x20000
    s_lshl_b32 s10, s2, 2
    s_add_u32 s10, s10, {S_WAVE}
    s_lshl_b32 s10, s10, 6
    v_mov_b32 v0, s10
"""
        for j in range(k + 1):
            tailc += f"    v_mov_b32 v1, s{STAMPS[j]}\n    buffer_store_dword v1, v0, s[4:7], 0 offen offset:{4 * j}\n"
    head = f"""; Fused DiNAT neighborhood attention (QKV proj + 7x7 dilated NA + out proj), one 14x14 query tile per workgroup,
{('; stamps=' + ','.join(stamps)) if PROF else ';'}
; @launch grid=(256,1,1) block=(256,1,1) lds={LDS_TOTAL}
.amdgcn_target "amdgcn-amd-amdhsa--gfx950"
.text
.globl {NAME}_kernel
.p2align 8
.type {NAME}_kernel,@function
{NAME}_kernel:
    s_cmp_ge_u32 s2, 256
    s_cbranch_scc0 L_go
    s_endpgm
L_go:
"""
    tail = f"""    s_endpgm
L_end:
.section .rodata,"a"
.p2align 6
.amdhsa_kernel {NAME}_kernel
  .amdhsa_next_free_vgpr 512
  .amdhsa_next_free_sgpr 102
  .amdhsa_accum_offset 256
  .amdhsa_group_segment_fixed_size 0
  .amdhsa_kernarg_size 56
  .amdhsa_user_sgpr_count 2
  .amdhsa_user_sgpr_kernarg_segment_ptr 1
  .amdhsa_system_sgpr_workgroup_id_x 1
.end_amdhsa_kernel
"""
    return head + body + tailc + tail


if __name__ == "__main__":
    out = sys.argv[1] if len(sys.argv) > 1 else f"/code/{NAME}.s"
    open(out, "w").write(gen())
```

```python
import math
import os
import struct
import sys

sys.path.insert(0, os.path.dirname(os.path.abspath(__file__)))
from sched import Prog, I, R, C, rng

NAME = "standalone__neighborhood_dinat__vision"
ENV = os.environ.get

XROW = 7744
XB = 0
EB = 8 * XROW
EROW = 320
EHEAD = 11 * EROW
OB = EB + 4 * EHEAD
WB = OB + 12288
LDS_TOTAL = WB + 4 * 18432
RSTR = 172032

S_X, S_W, S_WO, S_RPB, S_OUT = 4, 8, 12, 16, 20
S_TH, S_TW, S_WAVE, S_C, S_PIX, S_XB, S_320 = "s34", "s35", "s36", "s37", "s38", "s39", "s40"
S_M0 = ["s41", "s42"]
S_XR = {0: "s43", 1: "s44", 2: "s45", 17: "s46", 18: "s47", 19: "s48"}
S_WCOL, S_WLDS, S_OB = "s49", "s50", "s51"
S_T = ["s52", "s53", "s54", "s55"]
S_XO = "s56"
S_WOFF = "s57"
S_SO = ["s58", "s59"]
S_CODE0 = 60
STAMP0 = 24

K0 = 0
V0 = 66
Q0 = 132
SQ = [144 + 4 * i for i in range(8)]
PQ = [176, 180]
OQ = 184
ACC = [200 + 4 * i for i in range(6)]
XA, XQ, XQW, XC = 224, 225, 226, 227
ELA, ELB, ERB, ERC, SH2, SHC = 228, 229, 230, 231, 232, 233
ET = [234, 235, 236]
OW4, OW2, ORD, WOP, WOC = 237, 238, 239, 240, 241
STL4, STL2, STR4, STR2 = 242, 243, 244, 245
XD = [246, 247]
M0, M1, MT = 248, 249, 250
WD = [251, 252, 253]
WT = [254, 255]
A = 256
WK, WV, WQ = A + 0, A + 72, A + 144
ONES = A + 216
RING = [A + 220 + 4 * i for i in range(9)]


def f32bits(x):
    return struct.unpack("<I", struct.pack("<f", x))[0]


NEG = f32bits(-1e30)


def kreg(t):
    k, n = t
    return K0 + 6 * {"A": n % 4, "B": 4 + n % 4, "C": 8 + n % 3}[k]


def vreg(t, td):
    k, n = t
    if k == "C":
        o = 16 + 2 * (n % 3)
    else:
        o = 8 * ((n >> 1) & 1) + {("A", 0): 0, ("B", 0): 2, ("B", 1): 4, ("A", 1): 6}[(k, n & 1)]
    return V0 + 22 * td + o


def block_groups(side, s):
    if side == "L":
        return [sorted([("A", p), ("B", p)], key=lambda t: vreg(t, 0)) for p in range(s, s + 4)]
    bs = [("B", p) for p in range(s, s + 4)]
    g1 = sorted([t for t in bs if ((t[1] >> 1) & 1) == ((s >> 1) & 1)], key=lambda t: vreg(t, 0))
    g2 = sorted([t for t in bs if ((t[1] >> 1) & 1) != ((s >> 1) & 1)], key=lambda t: vreg(t, 0))
    cs = [("C", m) for m in range(s // 2, (2 * s + 7) // 4 + 1)]
    groups = [g1, g2]
    best = None
    for i in range(len(cs)):
        for j in range(i + 1, len(cs)):
            if abs(vreg(cs[i], 0) - vreg(cs[j], 0)) == 2 and (best is None):
                best = (i, j)
    if best is None:
        groups += [[t] for t in cs]
    else:
        pair = sorted([cs[best[0]], cs[best[1]]], key=lambda t: vreg(t, 0))
        rest = [[t] for k, t in enumerate(cs) if k not in best]
        newest = cs[-1]
        if newest in pair:
            groups += rest + [pair]
        else:
            groups += [pair] + rest
    return groups


def rowidx(thc, br, qr, slot):
    act = slot
    if thc == 0 and slot < 2:
        if br != 0:
            return 7
        act = slot + 8
    if thc == 2 and slot >= 18:
        if br != 6:
            return 7
        act = slot - 8
    sr = max(qr, 3) if thc == 0 else (min(qr, 10) if thc == 2 else qr)
    if not (sr <= act <= sr + 6):
        return 7
    rr = act - qr + 3
    if 3 <= rr <= 9:
        return rr - 3
    return rr - 2 if thc == 0 else rr + 8


def code_of(thc, br, kind, n):
    v = 0
    if kind == "C":
        for qh in range(2):
            for g in range(4):
                v |= rowidx(thc, br, 2 * br + qh, 4 * n + g) << (4 * (4 * qh + g))
    else:
        for qh in range(2):
            for gh in range(2):
                v |= rowidx(thc, br, 2 * br + qh, 2 * n + gh) << (4 * (2 * qh + gh))
    return v


class Pool:
    def __init__(self, regs):
        self.regs = regs
        self.k = 0

    def get(self):
        r = self.regs[self.k % len(self.regs)]
        self.k += 1
        return r


def gen():
    p = Prog()
    PROF = ENV("PROF")
    ring, accp, sp, pp, etp = Pool(RING), Pool(ACC), Pool(SQ), Pool(PQ), Pool(ET)
    stamps = []

    def stamp(name, deps):
        if not PROF:
            return
        k = len(stamps)
        stamps.append(name)
        i = p.raw(f"s_memtime s[100:101]\ns_waitcnt lgkmcnt(0)\nv_writelane_b32 {R(A + 255 - 256 + 0) if False else 'v255'}, s100, {k}"
                  if False else f"s_memtime s[100:101]\ns_waitcnt lgkmcnt(0)\ns_mov_b32 s{STAMPS[k]}, s100",
                  "salu", (), {"s100", "s101", f"s{STAMPS[k]}"}, deps=deps)
        i.drain = True
        return i

    STAMPS = [3] + list(range(86, 100))

    p.tag = "pro"
    p.pri = -3
    stamp("start", [])
    LAT_W = int(ENV("LATW", 800))
    LAT_X = int(ENV("LATX", 1300))
    ld = p.raw("s_load_dwordx4 s[24:27], s[0:1], 0\ns_load_dwordx4 s[28:31], s[0:1], 16\ns_load_dwordx2 s[32:33], s[0:1], 32",
               "salu", (), {"kload"}, slots=3)
    T0, T1, T2, T3 = S_T
    LANE, G, C8, RB, DUMMY, PFO = OQ, OQ + 1, OQ + 2, OQ + 3, OQ + 4, OQ + 5
    TA = list(range(74, 82))
    TB = list(range(96, 104))
    TC = list(range(118, 126))
    TD = list(range(60, 66))
    TE = list(range(OQ + 8, OQ + 16))
    if not ENV("NOPF"):
        p.raw("s_getpc_b64 s[12:13]\ns_and_b32 s13, s13, 0xffff\ns_mov_b32 s14, L_end-L_go-64\ns_mov_b32 s15, 0x20000",
              "salu", (), {"s12", "s13", "s14", "s15"}, slots=4)
        p.valu("v_lshlrev_b32", PFO, C(7), 0)
        p.salu("s_mov_b32", T0, 32768)
        p.vld("buffer_load_dword", DUMMY, 1, PFO, 12, lat=LAT_X).wr = set()
        p.vld("buffer_load_dword", DUMMY, 1, PFO, 12, soff=T0, lat=LAT_X).wr = set()
    p.valu("v_lshrrev_b32", TA[0], C(6), 0)
    p.valu("v_and_b32", LANE, C(63), 0)
    p.rfl(S_WAVE, TA[0])
    p.salu("s_lshr_b32", T1, "s2", 3)
    p.salu("s_and_b32", T2, "s2", 1)
    p.salu("s_lshl_b32", T2, T2, 2)
    p.salu("s_lshr_b32", T3, T1, 3)
    p.salu("s_or_b32", S_TH, T2, T3)
    p.salu("s_and_b32", S_TW, T1, 7)
    p.salu("s_bfe_u32", T2, "s2", 0x10002)
    p.salu("s_mul_i32", T2, T2, 86016)
    p.salu("s_bfe_u32", T3, "s2", 0x10001)
    p.salu("s_mul_i32", T3, T3, 384)
    p.salu("s_add_u32", S_PIX, T2, T3)

    def wdma_offsets(pitch, t):
        for j in range(3):
            p.valu("v_add_u32", t[0], C(64 * j), LANE)
            p.valu("v_mul_u32_u24", t[1], C(10923), t[0])
            p.valu("v_lshrrev_b32", t[1], C(16), t[1])
            p.valu("v_mul_u32_u24", t[2], C(6), t[1])
            p.valu("v_sub_u32", t[0], t[0], t[2])
            p.valu("v_lshrrev_b32", t[2], C(1), t[1])
            p.valu("v_and_b32", t[2], C(4), t[2])
            p.valu("v_xor_b32", t[1], t[1], t[2])
            p.valu("v_mul_u32_u24", t[1], C(pitch), t[1])
            p.valu("v_lshl_add_u32", WD[j], t[0], C(4), t[1])

    p.salu("s_lshl_b32", S_M0[0], S_WAVE, 10)
    p.salu("s_add_u32", S_M0[1], S_M0[0], 4096)
    p.salu("s_min_u32", S_M0[1], S_M0[1], 416 * 16)
    p.salu("s_mul_i32", T2, S_TW, 14)
    p.salu("s_sub_u32", T2, T2, 3)
    t0, t1, t2 = TA[:3]
    for j in range(2):
        p.salu("s_lshr_b32", T3, S_M0[j], 4)
        p.valu("v_add_u32", t0, T3, LANE)
        p.valu("v_mul_u32_u24", t1, C(2731), t0)
        p.valu("v_lshrrev_b32", t1, C(16), t1)
        p.valu("v_mul_u32_u24", t2, C(24), t1)
        p.valu("v_sub_u32", t0, t0, t2)
        p.valu("v_and_b32", t2, C(2), t1)
        p.valu("v_xor_b32", t0, t0, t2)
        p.valu("v_add_u32", t1, T2, t1)
        p.valu("v_max_i32", t1, C(0), t1)
        p.valu("v_min_i32", t1, C(111), t1)
        p.valu("v_mul_u32_u24", t1, C(768), t1)
        p.valu("v_lshl_add_u32", XD[j], t0, C(4), t1)
    p.salu("s_mul_i32", S_OB, S_TH, 14 * RSTR)
    p.salu("s_add_u32", S_OB, S_OB, S_PIX)
    p.salu("s_sub_u32", S_XB, S_OB, 3 * RSTR)
    p.sel(S_TH, 0, [(S_XR[0], 8, 0), (S_XR[1], 9, 1), (S_XR[2], 3, 2)])
    for r in range(3):
        p.salu("s_mul_i32", S_XR[r], S_XR[r], RSTR)
        p.salu("s_add_u32", S_XR[r], S_XR[r], S_XB)
    wdma_offsets(1152, TA)
    p.salu("s_mul_i32", S_WCOL, S_WAVE, 96)
    p.salu("s_mul_i32", S_WLDS, S_WAVE, 18432)
    p.salu("s_add_u32", S_WLDS, S_WLDS, WB)
    p.salu("s_mul_i32", T2, T1, 37)
    p.salu("s_lshr_b32", T2, T2, 8)
    p.salu("s_mul_i32", T2, T2, 7)
    p.salu("s_sub_u32", T2, T1, T2)
    p.salu("s_lshl_b32", T2, T2, 15)
    p.salu("s_and_b32", T3, T1, 3)
    p.salu("s_lshl_b32", T3, T3, 15)
    kw = p.raw("s_waitcnt lgkmcnt(0)", "salu", {"kload"}, {f"s{i}" for i in range(24, 34)}, deps=[(ld, 500)])
    kw.drain = True

    def mksrd(srd, q, size):
        p.salu("s_mov_b32", f"s{srd}", f"s{q}")
        p.salu("s_and_b32", f"s{srd + 1}", f"s{q + 1}", 0xFFFF)
        p.salu("s_mov_b32", f"s{srd + 2}", size)
        p.salu("s_mov_b32", f"s{srd + 3}", 0x00020000)

    slot_busy = [[] for _ in range(6)]

    def wchunk(srd, pitch, colbyte, c, lat=LAT_W):
        p.salu("s_add_u32", S_WOFF, S_WCOL, colbyte + c * 32 * pitch)
        ds = []
        for j in range(3):
            p.salu("s_add_u32", "m0", S_WLDS, c * 3072 + 1024 * j)
            ds.append(p.dma(WD[j], srd, S_WOFF, lat=lat, waits=slot_busy[c]))
        slot_busy[c] = []
        return ds

    def wread(dst, c, ds):
        for ct in range(3):
            for half in range(2):
                r = p.dsr("ds_read_b64_tr_b16", dst + 4 * (3 * c + ct) + 2 * half, 2, WT[half], off=c * 3072 + ct * 32,
                          waits=ds)
                slot_busy[c].append(r)

    xdma = {}

    def xpair(pr, deps=()):
        ds = []
        for r in (2 * pr, 2 * pr + 1):
            if r in S_XR:
                so = S_XR[r]
            else:
                so = S_XO
                p.salu("s_add_u32", S_XO, S_XB, r * RSTR)
            for j in range(2):
                p.salu("s_add_u32", "m0", S_M0[j], XB + (r & 7) * XROW)
                ds.append(p.dma(XD[j], S_X, so, lat=LAT_X, deps=deps))
        xdma[pr] = ds

    mksrd(S_W, 26, 221184)
    if not ENV("NOPF"):
        p.vld("buffer_load_dword", DUMMY, 1, PFO, S_W, soff=T2, lat=LAT_X).wr = set()
    mksrd(S_X, 24, 19267584)
    xpair(0)
    mksrd(S_WO, 28, 73728)
    mksrd(S_RPB, 30, 1352)
    if not ENV("NOPF"):
        p.vld("buffer_load_dword", DUMMY, 1, PFO, S_WO, soff=T3, lat=LAT_X).wr = set()
    p.salu("s_mul_i32", T0, S_WAVE, 338)
    p.valu("v_lshlrev_b32", PQ[1] + 3, C(1), LANE)
    for i in range(3):
        p.vld("buffer_load_ushort", PQ[1] + i, 1, PQ[1] + 3, S_RPB, soff=T0, off=128 * i, lat=LAT_X)
    wk_d = [wchunk(S_W, 1152, 384, c, lat=LAT_X if c < 2 else LAT_W) for c in range(6)]
    xpair(1)
    xpair(2)
    xpair(3)

    p.pri = -2
    mksrd(S_OUT, 32, 19267584)
    p.valu("v_lshrrev_b32", G, C(4), LANE)
    p.valu("v_and_b32", C8, C(7), LANE)
    p.valu("v_bfe_u32", RB, LANE, C(3), C(1))
    t0, t1, t2, t3, t4, t5 = TB[:6]
    U0, U1, U2, U3 = "s24", "s25", "s26", "s27"
    p.valu("v_bfe_u32", t0, LANE, C(2), C(2))
    p.valu("v_and_b32", t1, C(3), LANE)
    p.valu("v_and_b32", t2, C(1), G)
    p.valu("v_lshl_add_u32", t3, G, C(3), t0)
    for half in range(2):
        p.valu("v_xor_b32", t4, C(half), t2)
        p.valu("v_lshl_add_u32", t4, t4, C(2), t3)
        p.valu("v_mul_u32_u24", t4, C(96), t4)
        p.valu("v_lshl_add_u32", t4, t1, C(3), t4)
        p.valu("v_add_u32", WT[half], S_WLDS, t4)
    p.valu("v_lshl_add_u32", t3, G, C(2), t0)
    p.valu("v_lshrrev_b32", t4, C(1), G)
    p.valu("v_lshlrev_b32", t4, C(2), t4)
    p.valu("v_xor_b32", t3, t3, t4)
    p.valu("v_mul_u32_u24", t3, C(96), t3)
    p.valu("v_add_u32", t3, S_WLDS, t3)
    p.salu("s_and_b32", U0, S_WAVE, 1)
    p.salu("s_lshl_b32", U1, U0, 5)
    p.salu("s_lshl_b32", U2, U0, 6)
    p.salu("s_sub_u32", U2, 64, U2)
    p.valu("v_lshl_add_u32", t4, t1, C(4), t3)
    p.valu("v_add_u32", WOP, U1, t4)
    p.valu("v_lshl_add_u32", t4, t1, C(3), t3)
    p.valu("v_add_u32", WOC, U2, t4)
    p.valu("v_mul_u32_u24", t0, C(XROW), t0)
    p.valu("v_add_u32", t1, C(16), t1)
    p.valu("v_mul_u32_u24", t1, C(384), t1)
    p.valu("v_and_b32", t2, C(2), LANE)
    p.valu("v_xor_b32", t2, t2, G)
    p.valu("v_lshlrev_b32", t2, C(4), t2)
    p.valu("v_add3_u32", XC, t0, t1, t2)
    p.valu("v_mul_u32_u24", t3, C(XROW), RB)
    for dst, co in ((XA, 0), (XQ, 3)):
        p.valu("v_add_u32", t0, C(co), C8)
        p.valu("v_and_b32", t1, C(2), t0)
        p.valu("v_xor_b32", t1, t1, G)
        p.valu("v_mul_u32_u24", t0, C(384), t0)
        p.valu("v_lshl_add_u32", t0, t1, C(4), t0)
        p.valu("v_add_u32", dst, t0, t3)
    p.valu("v_xor_b32", t1, C(1), RB)
    p.valu("v_mul_u32_u24", t1, C(7 * XROW), t1)
    p.valu("v_add_u32", XQW, t0, t1)

    p.pri = 2
    p.tag = "set"
    p.valu("v_mul_u32_u24", t3, C(RSTR), RB)
    p.valu("v_mul_u32_u24", t4, C(768), C8)
    p.valu("v_add3_u32", t3, t3, t4, S_WCOL)
    p.valu("v_lshl_add_u32", t4, G, C(4), t3)
    p.valu("v_add_u32", STL4, U1, t4)
    p.valu("v_lshl_add_u32", t4, G, C(3), t3)
    p.valu("v_add_u32", STL2, U2, t4)
    p.valu("v_bfrev_b32", t4, C(1))
    p.cmp("v_cmp_lt_u32", C(5), C8)
    p.cndmask(STR4, STL4, t4)
    p.cndmask(STR2, STL2, t4)
    p.salu("s_mul_i32", U3, S_TW, 14 * 768)
    p.salu("s_add_u32", S_OB, S_OB, U3)
    p.salu("s_lshr_b32", U1, S_WAVE, 1)
    p.salu("s_mul_i32", U1, U1, 3072)
    p.salu("s_add_u32", U1, U1, OB)
    p.salu("s_lshl_b32", U2, U0, 11)
    p.salu("s_add_u32", U2, U2, U1)
    p.valu("v_lshl_add_u32", OW4, LANE, C(4), U2)
    p.salu("s_lshl_b32", U2, U0, 3)
    p.salu("s_add_u32", U2, U2, U1)
    p.salu("s_add_u32", U2, U2, 1024)
    p.valu("v_lshl_add_u32", OW2, LANE, C(4), U2)
    p.valu("v_lshlrev_b32", ORD, C(4), LANE)
    p.valu("v_add_u32", ORD, C(OB), ORD)
    p.salu("s_mov_b32", S_C, f32bits((48 ** -0.5) * math.log2(math.e)))
    p.salu("s_mov_b32", S_320, EROW)
    p.sel(S_TH, 7, [(S_XR[17], 16, 17), (S_XR[18], 10, 18), (S_XR[19], 11, 19)])
    for r in range(17, 20):
        p.salu("s_mul_i32", S_XR[r], S_XR[r], RSTR)
        p.salu("s_add_u32", S_XR[r], S_XR[r], S_XB)

    EV = SQ[0]
    EM = PQ[0]
    Z0, Z1, Z2, Z3, Z4, Z5 = "s28", "s29", "s30", "s31", "s32", "s33"
    p.sel(S_TH, 0, [(Z0, 2, -8)])
    p.sel(S_TW, 0, [(Z1, 3, 0), (Z2, -3, -2)])
    p.salu("s_lshl_b32", Z3, S_WAVE, 10)
    p.salu("s_add_u32", Z3, Z3, OB + 64)
    t0, t1, t2, t3, t4, t5 = TC[:6]
    for it in range(4):
        p.valu("v_add_u32", t0, C(64 * it), LANE)
        if it == 3:
            p.valu("v_min_u32", t0, C(219), t0)
        p.valu("v_mul_u32_u24", t1, C(3277), t0)
        p.valu("v_lshrrev_b32", t1, C(16), t1)
        p.valu("v_mul_u32_u24", t2, C(20), t1)
        p.valu("v_sub_u32", t0, t0, t2)
        p.valu("v_add_u32", t2, C(-11), t0)
        p.valu("v_max_i32", t2, C(0), t2)
        p.valu("v_mul_u32_u24", t3, C(11), t2)
        p.valu("v_lshrrev_b32", t3, C(5), t3)
        p.valu("v_mul_u32_u24", t4, C(3), t3)
        p.valu("v_sub_u32", t2, t2, t4)
        p.valu("v_lshlrev_b32", t2, C(2), t2)
        p.valu("v_sub_u32", t3, t2, t3)
        p.cmp("v_cmp_lt_u32", C(10), t0)
        p.valu("v_add_u32", t3, Z1, t3)
        p.valu("v_add_u32", t2, Z2, t2)
        p.valu("v_add_u32", t4, C(-3), t0)
        p.cndmask(t0, t0, t3)
        p.cndmask(EM + it, t4, t2)
        p.cmp("v_cmp_lt_u32", C(6), t1)
        p.valu("v_add_u32", t2, C(3), t1)
        p.valu("v_add_u32", t3, Z0, t1)
        p.cndmask(t2, t2, t3)
        p.cmp("v_cmp_eq_u32", C(7), t1)
        p.valu("v_mov_b32", t3, C(32))
        p.valu("v_mul_i32_i24", t2, C(13), t2)
        p.cndmask(EM + it, EM + it, t3)
        p.valu("v_add_u32", t0, t0, t2)
        p.valu("v_lshl_add_u32", SQ[4] + it, t0, C(2), Z3)

    t0, t1, t2, t3, t4, t5 = TD
    p.salu("s_mul_i32", Z4, S_WAVE, EHEAD)
    p.salu("s_add_u32", Z4, Z4, EB)
    p.sel(S_TW, 7, [(Z5, 3, 0)])
    p.valu("v_and_b32", t5, C(1), G)
    for dst, side, gadd in ((ELA, "L", 0), (ELB, "L", 2), (ERB, "R", 0), (ERC, "R", None)):
        if side == "L":
            p.valu("v_mov_b32", t0, C8)
        else:
            p.valu("v_min_u32", t0, C(5), C8)
        if gadd is None:
            p.valu("v_mov_b32", t1, C(2))
        else:
            p.valu("v_add_u32", t1, C(gadd), t5)
        p.cmp("v_cmp_eq_u32", C(3), t1)
        p.valu("v_lshlrev_b32", t2, C(2), t1)
        p.valu("v_sub_u32", t2, t2, t0)
        p.valu("v_add_u32", t2, C(3), t2)
        p.valu("v_min_u32", t2, C(10), t2)
        if side == "R":
            p.valu("v_add_u32", t0, C(-3), t0)
        p.valu("v_mul_u32_u24", t3, C(3), t0)
        p.valu("v_add3_u32", t3, t3, t1, C(11))
        p.valu("v_mov_b32", t4, C(10))
        p.cndmask(t3, t3, t4)
        p.cmp("v_cmp_gt_u32", Z1 if side == "L" else Z5, t0)
        p.cndmask(t2, t2, t3)
        p.valu("v_lshl_add_u32", dst, t2, C(4), Z4)
    p.valu("v_lshrrev_b32", t0, C(1), G)
    p.valu("v_lshl_add_u32", t0, RB, C(1), t0)
    p.valu("v_lshlrev_b32", SH2, C(2), t0)
    p.valu("v_lshl_add_u32", t0, RB, C(2), G)
    p.valu("v_lshlrev_b32", SHC, C(2), t0)
    p.valu("v_mov_b32", t0, C(0x3F803F80))
    for i in range(4):
        p.valu("v_accvgpr_write_b32", ONES + i, t0)
    codes = {}
    code_reg = {}

    def code(br, kind, n):
        k = "C" if kind == "C" else "P"
        key = tuple(code_of(thc, br, k, n) for thc in range(3))
        if key not in codes:
            sreg = f"s{S_CODE0 + len(codes)}"
            assert S_CODE0 + len(codes) < 86
            codes[key] = sreg
        return codes[key]

    for br in range(7):
        for side in "LR":
            for grp in block_groups(side, br):
                for t in grp:
                    code_reg[(br, t)] = code(br, t[0], t[1])
    for key, sreg in codes.items():
        p.salu("s_mov_b32", sreg, key[1])
    for thc, thv in ((0, 0), (2, 7)):
        p.sel(S_TH, thv, [(sreg, key[thc], None) for key, sreg in codes.items() if key[thc] != key[1]])
    ewr = []

    def ebuild():
        t0, t1, t2, t3, t4, t5 = TC[:6]
        p.salu("s_mov_b32", Z0, f32bits(math.sqrt(48.0)))
        p.valu("v_mov_b32", t5, C(NEG))
        p.valu("v_lshl_add_u32", t4, LANE, C(2), Z3)
        ws = []
        for i in range(3):
            v = PQ[1] + i
            p.valu("v_lshlrev_b32", v, C(16), v)
            p.valu("v_mul_f32", v, Z0, v)
            ws.append(p.dsw("ds_write_b32", t4, v, 1, off=256 * i))
        for it in range(4):
            for h in range(2):
                rd = p.dsr("ds_read2_b32", EV + 4 * it + 2 * h, 2, SQ[4] + it, deps=ws)
                rd.text += f" offset0:{2 * h} offset1:{2 * h + 1}"
        for it in range(4):
            for r in range(4):
                v = EV + 4 * it + r
                p.valu("v_add_u32", t0 + (r & 1) * 3, C(r), EM + it)
                p.cmp("v_cmp_gt_u32", C(7), t0 + (r & 1) * 3, dst=("vcc", "s[24:25]")[r & 1])
                p.cndmask(v, t5, v, mask=("vcc", "s[24:25]")[r & 1])
            p.valu("v_add_u32", t1, C(64 * it), LANE)
            if it == 3:
                p.valu("v_min_u32", t1, C(219), t1)
            p.valu("v_lshl_add_u32", t2, t1, C(4), Z4)
            ewr.append(p.dsw("ds_write_b128", t2, EV + 4 * it, 4))

    xbar = {}
    xuse = {}

    def xread(kind, n, ks):
        f = ring.get()
        if kind in "AB":
            addr, off, pairs = XA, ((2 * n) & 7) * XROW + (3072 if kind == "B" else 0), [n]
        elif kind == "C":
            addr, off, pairs = XC, ((4 * n) & 7) * XROW, [2 * n, 2 * n + 1]
        else:
            r = 2 * n + 3
            pairs = [n + 1, n + 2]
            addr, off = (XQW, 0) if (r & 7) == 7 else (XQ, (r & 7) * XROW)
            off += 3072 if kind == "R" else 0
        p.dsr("ds_read_b128", f, 4, addr, off=XB + off + 64 * ks, deps=[xbar[q] for q in pairs])
        return f, pairs

    def proj(what, t):
        p.tag = f"{what}_{t[0]}{t[1]}"
        accs = {(w, c): accp.get() for w in what for c in range(3)}
        last = None
        for ks in range(6):
            p.pri = 0
            f, pairs = xread(t[0], t[1], ks)
            p.pri = 1
            for w in what:
                for c in range(3):
                    a = accs[(w, c)]
                    wf = {"K": WK, "V": WV, "Q": WQ}[w] + 4 * (3 * ks + c)
                    if w == "V":
                        last = p.mfma(a, f, wf, a if ks else None)
                    else:
                        last = p.mfma(a, wf, f, a if ks else None)
        for q in pairs:
            xuse.setdefault(q, []).append(last)
        p.pri = 0
        for w in what:
            for c in range(3):
                a = accs[(w, c)]
                if w == "K":
                    d = kreg(t) + 2 * c
                elif w == "V":
                    d = vreg(t, c)
                else:
                    d = Q0 + (6 if t[0] == "R" else 0) + 2 * c
                p.valu("v_cvt_pk_bf16_f32", d, a, a + 1)
                p.valu("v_cvt_pk_bf16_f32", d + 1, a + 2, a + 3)
        return last

    squad = {}

    def s_part(side, s):
        p.tag = f"S_{side}{s}"
        q = Q0 + (6 if side == "R" else 0)
        tiles = [t for grp in block_groups(side, s) for t in grp]
        idxreg = {}
        for t in tiles:
            sq = sp.get()
            squad[(side, s, t)] = sq
            p.pri = 0
            base = {("L", "A"): ELA, ("L", "B"): ELB, ("R", "B"): ERB, ("R", "C"): ERC}[(side, t[0])]
            key = (t[0] == "C", t[1])
            if key not in idxreg:
                idxreg = {key: etp.get()}
                p.valu("v_bfe_u32", idxreg[key], code_reg[(s, t)], SHC if t[0] == "C" else SH2, C(4))
                first = side == "L"
            else:
                first = False
            ar = etp.get() if first else idxreg[key]
            p.valu("v_mad_u32_u24", ar, idxreg[key], S_320, base)
            p.dsr("ds_read_b128", sq, 4, ar, waits=ewr)
            p.mfma(sq, kreg(t), q, sq)
            last = p.mfma(sq, kreg(t) + 4, q + 4, sq, k32=False)
        return last

    def xpv(side, s):
        p.tag = f"X_{side}{s}"
        p.pri = 1
        groups = block_groups(side, s)
        tiles = [t for grp in groups for t in grp]
        vals = [squad[(side, s, t)] + r for t in tiles for r in range(4)]
        p.valu("v_max3_f32", M0, vals[0], vals[1], vals[2])
        p.valu("v_max3_f32", M1, vals[3], vals[4], vals[5])
        k = 6
        m = M0
        while k < len(vals):
            p.valu("v_max3_f32", m, m, vals[k], vals[k + 1])
            m = M1 if m == M0 else M0
            k += 2
        p.valu("v_max_f32", M0, M0, M1)
        p.valu("v_mov_b32", M1, M0)
        p.perm(16, M0, M1)
        p.valu("v_max_f32", M0, M0, M1)
        p.valu("v_mov_b32", M1, M0)
        p.perm(32, M0, M1)
        p.valu("v_max_f32", M0, M0, M1)
        p.valu("v_mul_f32", MT, S_C, M0)
        last = None
        for gi, grp in enumerate(groups):
            pq = pp.get()
            p.pri = 1
            p.tag = f"X_{side}{s}"
            for j, t in enumerate(grp):
                sq = squad[(side, s, t)]
                for r in range(4):
                    p.valu("v_fma_f32", sq + r, sq + r, S_C, ("neg", MT))
                for r in range(4):
                    p.trans("v_exp_f32", sq + r, sq + r)
                p.valu("v_cvt_pk_bf16_f32", pq + 2 * j, sq, sq + 1)
                p.valu("v_cvt_pk_bf16_f32", pq + 2 * j + 1, sq + 2, sq + 3)
            p.pri = 0
            p.tag = f"PV_{side}{s}"
            k32 = len(grp) == 2
            last = p.mfma(OQ + 12, ONES, pq, OQ + 12 if gi else None, k32=k32)
            for td in range(3):
                last = p.mfma(OQ + 4 * td, vreg(grp[0], td), pq, OQ + 4 * td if gi else None, k32=k32)
        return last

    owr = {}

    def epi(side, s, deps):
        p.tag = f"E_{side}{s}"
        p.pri = 0
        p.trans("v_rcp_f32", OQ + 13, OQ + 12)
        for i in range(6):
            p.valu("v_mul_f32", OQ + 2 * i, OQ + 2 * i, OQ + 13)
            p.valu("v_mul_f32", OQ + 2 * i + 1, OQ + 2 * i + 1, OQ + 13)
            p.valu("v_cvt_pk_bf16_f32", OQ + i, OQ + 2 * i, OQ + 2 * i + 1)
        off = 6144 if side == "R" else 0
        owr[(side, s)] = [p.dsw("ds_write_b128", OW4, OQ, 4, off=off, deps=deps),
                          p.dsw("ds_write_b64", OW2, OQ + 4, 2, off=off, deps=deps)]

    wo_d = []

    def outproj(s, bar):
        p.tag = f"OUT{s}"
        accs = [[accp.get() for m in range(3)] for b in range(2)]
        last = None
        for u in range(6):
            j, r = divmod(u, 3)
            b16 = [(6 * j, 6 * j + 1), (6 * j + 2, 6 * j + 5), (6 * j + 3, 6 * j + 4)][r]
            p.pri = 0
            of = []
            for b in range(2):
                f = ring.get()
                p.dsr("ds_read_b128", f, 4, ORD, off=6144 * b + 1024 * u, deps=[bar])
                of.append(f)
            for m in range(3):
                p.pri = 0
                wf = ring.get()
                for h in range(2):
                    p.dsr("ds_read_b64_tr_b16", wf + 2 * h, 2, WOC if m == 2 else WOP,
                          off=b16[h] * 1536 + (8 if m == 1 else 0), waits=wo_d)
                p.pri = 1
                for b in range(2):
                    a = accs[b][m]
                    last = p.mfma(a, wf, of[b], a if u else None)
        p.pri = 0
        STFLAGS = ENV("STLAST", " sc0 sc1") if s >= int(ENV("STFROM", 6)) else ENV("STFLAGS", " sc0 sc1")
        for b in range(2):
            a0, a1, a2 = accs[b]
            p.salu("s_add_u32", S_SO[b], S_OB, 2 * s * RSTR + b * 8 * 768)
            p.valu("v_cvt_pk_bf16_f32", a0, a0, a0 + 1)
            p.valu("v_cvt_pk_bf16_f32", a0 + 1, a0 + 2, a0 + 3)
            p.valu("v_cvt_pk_bf16_f32", a0 + 2, a1, a1 + 1)
            p.valu("v_cvt_pk_bf16_f32", a0 + 3, a1 + 2, a1 + 3)
            p.vst("buffer_store_dwordx4", a0, 4, STR4 if b else STL4, S_OUT, S_SO[b], flags=STFLAGS)
            p.valu("v_cvt_pk_bf16_f32", a2, a2, a2 + 1)
            p.valu("v_cvt_pk_bf16_f32", a2 + 1, a2 + 2, a2 + 3)
            p.vst("buffer_store_dwordx2", a2, 2, STR2 if b else STL2, S_OUT, S_SO[b], flags=STFLAGS)
        return last

    p.tag = "wu"
    p.pri = 0
    wv_d, wq_d = [], []
    for c in range(6):
        wread(WK, c, wk_d[c])
    for c in range(6):
        wv_d.append(wchunk(S_W, 1152, 768, c))
    p.pri = 2
    ebuild()
    p.pri = 0
    xbar[0] = p.bar(waits=xdma[0])
    l = proj("K", ("A", 0))
    stamp("K_A0", [l])
    proj("K", ("B", 0))
    xbar[1] = p.bar(waits=xdma[1])
    proj("K", ("A", 1))
    proj("K", ("B", 1))
    proj("K", ("C", 0))
    xbar[2] = p.bar(waits=xdma[2])
    proj("K", ("A", 2))
    proj("K", ("B", 2))
    xbar[3] = p.bar(waits=xdma[3])
    p.tag = "wu"
    for c in range(6):
        wread(WV, c, wv_d[c])
        wq_d.append(wchunk(S_W, 1152, 0, c))
    proj("K", ("A", 3))
    proj("K", ("B", 3))
    l = proj("K", ("C", 1))
    stamp("K done", [l])
    for t in (("A", 0), ("B", 0), ("A", 1), ("B", 1), ("C", 0)):
        proj("V", t)
    p.tag = "wu"
    wdma_offsets(384, TE)
    for c in range(6):
        wread(WQ, c, wq_d[c])
        wo_d += wchunk(S_WO, 384, 0, c)
    proj("Q", ("L", 0))
    l = s_part("L", 0)
    stamp("S_L0", [l])

    for s in range(7):
        proj("Q", ("R", s))
        if s == 0:
            p.pri = 0
            b1 = p.bar(deps=xuse[0] + xuse[1])
            xpair(4, deps=[b1])
            xpair(5, deps=[b1])
            for t in (("A", 2), ("B", 2), ("A", 3), ("B", 3)):
                proj("V", t)
            proj("Q", ("L", 1))
            proj("V", ("C", 1))
            lo = None
        else:
            if s < 6:
                proj("Q", ("L", s + 1))
            p.pri = 0
            p.tag = f"B1_{s}"
            b1 = p.bar(deps=xuse.get(s + 1, []) if s + 5 < 10 else [],
                       waits=owr[("L", s - 1)] + owr[("R", s - 1)] + xdma.get(s + 4, []))
            stamp(f"B1_{s}", [b1])
            if s + 4 < 10:
                xbar[s + 4] = b1
            if s + 5 < 10:
                xpair(s + 5, deps=[b1])
            if s & 1:
                proj("KV", ("C", (s + 3) // 2))
            lo = outproj(s - 1, b1)
        xpv("L", s)
        s_part("R", s)
        p.pri = 0
        p.tag = f"B2_{s}"
        if s == 0:
            b2 = p.bar(waits=xdma[4])
            xbar[4] = b2
        else:
            b2 = p.bar(deps=[lo])
        epi("L", s, [b2])
        xpv("R", s)
        if s < 6:
            proj("KV", ("A", s + 4))
            proj("KV", ("B", s + 4))
            s_part("L", s + 1)
        epi("R", s, [b2])
    p.pri = 0
    b1 = p.bar(waits=owr[("L", 6)] + owr[("R", 6)])
    stamp("B1_7", [b1])
    outproj(6, b1)

    p.schedule(dma_gap=int(ENV("DMAGAP", 80)), max_vm=int(ENV("MAXVM", 14)))
    body = p.emit(annotate=bool(ENV("ANN")))
    if ENV("NOBAR"):
        body = body.replace("s_barrier", "s_nop 0")
    if ENV("NOST"):
        body = "\n".join(l if "buffer_store" not in l else "    s_nop 0" for l in body.split("\n"))
    if ENV("NOLGKM"):
        import re
        k = body.index("v_mfma")
        body = body[:k] + re.sub(r"s_waitcnt lgkmcnt\((\d+)\)\n(?!    s_mov_b32 s\d+, s100)", "s_nop 0\n", body[k:])
    cnt = {}
    slots = 0
    for i in p.order:
        cnt[i.kind] = cnt.get(i.kind, 0) + 1
        if i.kind not in ("mfma", "salu", "bar", "nop"):
            slots += i.slots
    sys.stderr.write(f"counts {cnt} vec-slots {slots} model-cycles {p.total} {p.stats} {p.estats} codes {len(codes)}\n")
    if ENV("TL"):
        seen = {}
        for i in p.order:
            if i.kind != "nop":
                seen.setdefault(i.tag, [i.t, i.t])[1] = i.t
        for k, v in seen.items():
            sys.stderr.write(f"{k:10s} {v[0]:6d} {v[1]:6d}\n")

    tailc = ""
    if PROF:
        k = len(stamps)
        stamps.append("end")
        stamps.append("rt10ns")
        k += 1
        body = "    s_memrealtime s[100:101]\n    s_waitcnt lgkmcnt(0)\n    s_mov_b32 s99, s100\n" + body
        tailc = f"""    s_waitcnt vmcnt(0)
    s_memtime s[100:101]
    s_memrealtime s[10:11]
    s_load_dwordx2 s[8:9], s[0:1], 48
    s_waitcnt lgkmcnt(0)
    s_mov_b32 s{STAMPS[k - 1]}, s100
    s_sub_u32 s10, s10, s99
    s_add_u32 s{STAMPS[k]}, s10, s3
    s_mov_b32 s4, s8
    s_and_b32 s5, s9, 0xffff
    s_mov_b32 s6, 0x1000000
    s_mov_b32 s7, 0x20000
    s_lshl_b32 s10, s2, 2
    s_add_u32 s10, s10, {S_WAVE}
    s_lshl_b32 s10, s10, 6
    v_mov_b32 v0, s10
"""
        for j in range(k + 1):
            tailc += f"    v_mov_b32 v1, s{STAMPS[j]}\n    buffer_store_dword v1, v0, s[4:7], 0 offen offset:{4 * j}\n"
    head = f"""; Fused DiNAT neighborhood attention (QKV proj + 7x7 dilated NA + out proj), one 14x14 query tile per workgroup,
{('; stamps=' + ','.join(stamps)) if PROF else ';'}
; @launch grid=(256,1,1) block=(256,1,1) lds={LDS_TOTAL}
.amdgcn_target "amdgcn-amd-amdhsa--gfx950"
.text
.globl {NAME}_kernel
.p2align 8
.type {NAME}_kernel,@function
{NAME}_kernel:
    s_cmp_ge_u32 s2, 256
    s_cbranch_scc0 L_go
    s_endpgm
L_go:
"""
    tail = f"""    s_endpgm
L_end:
.section .rodata,"a"
.p2align 6
.amdhsa_kernel {NAME}_kernel
  .amdhsa_next_free_vgpr 512
  .amdhsa_next_free_sgpr 102
  .amdhsa_accum_offset 256
  .amdhsa_group_segment_fixed_size 0
  .amdhsa_kernarg_size 56
  .amdhsa_user_sgpr_count 2
  .amdhsa_user_sgpr_kernarg_segment_ptr 1
  .amdhsa_system_sgpr_workgroup_id_x 1
.end_amdhsa_kernel
"""
    return head + body + tailc + tail


if __name__ == "__main__":
    out = sys.argv[1] if len(sys.argv) > 1 else f"/code/{NAME}.s"
    open(out, "w").write(gen())
```

```python
import math
import os
import struct
import sys

sys.path.insert(0, os.path.dirname(os.path.abspath(__file__)))
from sched import Prog, I, R, C, rng

NAME = "standalone__neighborhood_dinat__vision"
ENV = os.environ.get

XROW = 7744
XB = 0
EB = 8 * XROW
EROW = 320
EHEAD = 11 * EROW
OB = EB + 4 * EHEAD
WB = OB + 12288
LDS_TOTAL = WB + 4 * 18432
RSTR = 172032

S_X, S_W, S_WO, S_RPB, S_OUT = 4, 8, 12, 16, 20
S_TH, S_TW, S_WAVE, S_C, S_PIX, S_XB, S_320 = "s34", "s35", "s36", "s37", "s38", "s39", "s40"
S_M0 = ["s41", "s42"]
S_XR = {0: "s43", 1: "s44", 2: "s45", 17: "s46", 18: "s47", 19: "s48"}
S_WCOL, S_WLDS, S_OB = "s49", "s50", "s51"
S_T = ["s52", "s53", "s54", "s55"]
S_XO = "s56"
S_WOFF = "s57"
S_SO = ["s58", "s59"]
S_CODE0 = 60
STAMP0 = 24

K0 = 0
V0 = 66
Q0 = 132
SQ = [144 + 4 * i for i in range(8)]
PQ = [176, 180]
OQ = 184
ACC = [200 + 4 * i for i in range(6)]
XA, XQ, XQW, XC = 224, 225, 226, 227
ELA, ELB, ERB, ERC, SH2, SHC = 228, 229, 230, 231, 232, 233
ET = [234, 235, 236]
OW4, OW2, ORD, WOP, WOC = 237, 238, 239, 240, 241
STL4, STL2, STR4, STR2 = 242, 243, 244, 245
XD = [246, 247]
M0, M1, MT = 248, 249, 250
WD = [251, 252, 253]
WT = [254, 255]
A = 256
WK, WV, WQ = A + 0, A + 72, A + 144
ONES = A + 216
RING = [A + 220 + 4 * i for i in range(9)]


def f32bits(x):
    return struct.unpack("<I", struct.pack("<f", x))[0]


NEG = f32bits(-1e30)


def kreg(t):
    k, n = t
    return K0 + 6 * {"A": n % 4, "B": 4 + n % 4, "C": 8 + n % 3}[k]


def vreg(t, td):
    k, n = t
    if k == "C":
        o = 16 + 2 * (n % 3)
    else:
        o = 8 * ((n >> 1) & 1) + {("A", 0): 0, ("B", 0): 2, ("B", 1): 4, ("A", 1): 6}[(k, n & 1)]
    return V0 + 22 * td + o


def block_groups(side, s):
    if side == "L":
        return [sorted([("A", p), ("B", p)], key=lambda t: vreg(t, 0)) for p in range(s, s + 4)]
    bs = [("B", p) for p in range(s, s + 4)]
    g1 = sorted([t for t in bs if ((t[1] >> 1) & 1) == ((s >> 1) & 1)], key=lambda t: vreg(t, 0))
    g2 = sorted([t for t in bs if ((t[1] >> 1) & 1) != ((s >> 1) & 1)], key=lambda t: vreg(t, 0))
    cs = [("C", m) for m in range(s // 2, (2 * s + 7) // 4 + 1)]
    groups = [g1, g2]
    best = None
    for i in range(len(cs)):
        for j in range(i + 1, len(cs)):
            if abs(vreg(cs[i], 0) - vreg(cs[j], 0)) == 2 and (best is None):
                best = (i, j)
    if best is None:
        groups += [[t] for t in cs]
    else:
        pair = sorted([cs[best[0]], cs[best[1]]], key=lambda t: vreg(t, 0))
        rest = [[t] for k, t in enumerate(cs) if k not in best]
        newest = cs[-1]
        if newest in pair:
            groups += rest + [pair]
        else:
            groups += [pair] + rest
    return groups


def rowidx(thc, br, qr, slot):
    act = slot
    if thc == 0 and slot < 2:
        if br != 0:
            return 7
        act = slot + 8
    if thc == 2 and slot >= 18:
        if br != 6:
            return 7
        act = slot - 8
    sr = max(qr, 3) if thc == 0 else (min(qr, 10) if thc == 2 else qr)
    if not (sr <= act <= sr + 6):
        return 7
    rr = act - qr + 3
    if 3 <= rr <= 9:
        return rr - 3
    return rr - 2 if thc == 0 else rr + 8


def code_of(thc, br, kind, n):
    v = 0
    if kind == "C":
        for qh in range(2):
            for g in range(4):
                v |= rowidx(thc, br, 2 * br + qh, 4 * n + g) << (4 * (4 * qh + g))
    else:
        for qh in range(2):
            for gh in range(2):
                v |= rowidx(thc, br, 2 * br + qh, 2 * n + gh) << (4 * (2 * qh + gh))
    return v


class Pool:
    def __init__(self, regs):
        self.regs = regs
        self.k = 0

    def get(self):
        r = self.regs[self.k % len(self.regs)]
        self.k += 1
        return r


def gen():
    p = Prog()
    PROF = ENV("PROF")
    ring, accp, sp, pp, etp = Pool(RING), Pool(ACC), Pool(SQ), Pool(PQ), Pool(ET)
    stamps = []

    def stamp(name, deps):
        if not PROF:
            return
        k = len(stamps)
        stamps.append(name)
        i = p.raw(f"s_memtime s[100:101]\ns_waitcnt lgkmcnt(0)\nv_writelane_b32 {R(A + 255 - 256 + 0) if False else 'v255'}, s100, {k}"
                  if False else f"s_memtime s[100:101]\ns_waitcnt lgkmcnt(0)\ns_mov_b32 s{STAMPS[k]}, s100",
                  "salu", (), {"s100", "s101", f"s{STAMPS[k]}"}, deps=deps)
        i.drain = True
        return i

    STAMPS = [3] + list(range(86, 100))

    p.tag = "pro"
    p.pri = -3
    stamp("start", [])
    LAT_W = int(ENV("LATW", 800))
    LAT_X = int(ENV("LATX", 1300))
    ld = p.raw("s_load_dwordx4 s[24:27], s[0:1], 0\ns_load_dwordx4 s[28:31], s[0:1], 16\ns_load_dwordx2 s[32:33], s[0:1], 32",
               "salu", (), {"kload"}, slots=3)
    T0, T1, T2, T3 = S_T
    LANE, G, C8, RB, DUMMY, PFO = OQ, OQ + 1, OQ + 2, OQ + 3, OQ + 4, OQ + 5
    TA = list(range(74, 82))
    TB = list(range(96, 104))
    TC = list(range(118, 126))
    TD = list(range(60, 66))
    TE = list(range(OQ + 8, OQ + 16))
    if not ENV("NOPF"):
        p.raw("s_getpc_b64 s[12:13]\ns_and_b32 s13, s13, 0xffff\ns_mov_b32 s14, L_end-L_go-64\ns_mov_b32 s15, 0x20000",
              "salu", (), {"s12", "s13", "s14", "s15"}, slots=4)
        p.valu("v_lshlrev_b32", PFO, C(7), 0)
        p.salu("s_mov_b32", T0, 32768)
        p.vld("buffer_load_dword", DUMMY, 1, PFO, 12, lat=LAT_X).wr = set()
        p.vld("buffer_load_dword", DUMMY, 1, PFO, 12, soff=T0, lat=LAT_X).wr = set()
    p.valu("v_lshrrev_b32", TA[0], C(6), 0)
    p.valu("v_and_b32", LANE, C(63), 0)
    p.rfl(S_WAVE, TA[0])
    p.salu("s_lshr_b32", T1, "s2", 3)
    p.salu("s_and_b32", T2, "s2", 1)
    p.salu("s_lshl_b32", T2, T2, 2)
    p.salu("s_lshr_b32", T3, T1, 3)
    p.salu("s_or_b32", S_TH, T2, T3)
    p.salu("s_and_b32", S_TW, T1, 7)
    p.salu("s_bfe_u32", T2, "s2", 0x10002)
    p.salu("s_mul_i32", T2, T2, 86016)
    p.salu("s_bfe_u32", T3, "s2", 0x10001)
    p.salu("s_mul_i32", T3, T3, 384)
    p.salu("s_add_u32", S_PIX, T2, T3)

    def wdma_offsets(pitch, t):
        for j in range(3):
            p.valu("v_add_u32", t[0], C(64 * j), LANE)
            p.valu("v_mul_u32_u24", t[1], C(10923), t[0])
            p.valu("v_lshrrev_b32", t[1], C(16), t[1])
            p.valu("v_mul_u32_u24", t[2], C(6), t[1])
            p.valu("v_sub_u32", t[0], t[0], t[2])
            p.valu("v_lshrrev_b32", t[2], C(1), t[1])
            p.valu("v_and_b32", t[2], C(4), t[2])
            p.valu("v_xor_b32", t[1], t[1], t[2])
            p.valu("v_mul_u32_u24", t[1], C(pitch), t[1])
            p.valu("v_lshl_add_u32", WD[j], t[0], C(4), t[1])

    p.salu("s_lshl_b32", S_M0[0], S_WAVE, 10)
    p.salu("s_add_u32", S_M0[1], S_M0[0], 4096)
    p.salu("s_min_u32", S_M0[1], S_M0[1], 416 * 16)
    p.salu("s_mul_i32", T2, S_TW, 14)
    p.salu("s_sub_u32", T2, T2, 3)
    t0, t1, t2 = TA[:3]
    for j in range(2):
        p.salu("s_lshr_b32", T3, S_M0[j], 4)
        p.valu("v_add_u32", t0, T3, LANE)
        p.valu("v_mul_u32_u24", t1, C(2731), t0)
        p.valu("v_lshrrev_b32", t1, C(16), t1)
        p.valu("v_mul_u32_u24", t2, C(24), t1)
        p.valu("v_sub_u32", t0, t0, t2)
        p.valu("v_and_b32", t2, C(2), t1)
        p.valu("v_xor_b32", t0, t0, t2)
        p.valu("v_add_u32", t1, T2, t1)
        p.valu("v_max_i32", t1, C(0), t1)
        p.valu("v_min_i32", t1, C(111), t1)
        p.valu("v_mul_u32_u24", t1, C(768), t1)
        p.valu("v_lshl_add_u32", XD[j], t0, C(4), t1)
    p.salu("s_mul_i32", S_OB, S_TH, 14 * RSTR)
    p.salu("s_add_u32", S_OB, S_OB, S_PIX)
    p.salu("s_sub_u32", S_XB, S_OB, 3 * RSTR)
    p.sel(S_TH, 0, [(S_XR[0], 8, 0), (S_XR[1], 9, 1), (S_XR[2], 3, 2)])
    for r in range(3):
        p.salu("s_mul_i32", S_XR[r], S_XR[r], RSTR)
        p.salu("s_add_u32", S_XR[r], S_XR[r], S_XB)
    wdma_offsets(1152, TA)
    p.salu("s_mul_i32", S_WCOL, S_WAVE, 96)
    p.salu("s_mul_i32", S_WLDS, S_WAVE, 18432)
    p.salu("s_add_u32", S_WLDS, S_WLDS, WB)
    p.salu("s_mul_i32", T2, T1, 37)
    p.salu("s_lshr_b32", T2, T2, 8)
    p.salu("s_mul_i32", T2, T2, 7)
    p.salu("s_sub_u32", T2, T1, T2)
    p.salu("s_lshl_b32", T2, T2, 15)
    p.salu("s_and_b32", T3, T1, 3)
    p.salu("s_lshl_b32", T3, T3, 15)
    kw = p.raw("s_waitcnt lgkmcnt(0)", "salu", {"kload"}, {f"s{i}" for i in range(24, 34)}, deps=[(ld, 500)])
    kw.drain = True

    def mksrd(srd, q, size):
        p.salu("s_mov_b32", f"s{srd}", f"s{q}")
        p.salu("s_and_b32", f"s{srd + 1}", f"s{q + 1}", 0xFFFF)
        p.salu("s_mov_b32", f"s{srd + 2}", size)
        p.salu("s_mov_b32", f"s{srd + 3}", 0x00020000)

    slot_busy = [[] for _ in range(6)]

    def wchunk(srd, pitch, colbyte, c, lat=LAT_W):
        p.salu("s_add_u32", S_WOFF, S_WCOL, colbyte + c * 32 * pitch)
        ds = []
        for j in range(3):
            p.salu("s_add_u32", "m0", S_WLDS, c * 3072 + 1024 * j)
            ds.append(p.dma(WD[j], srd, S_WOFF, lat=lat, waits=slot_busy[c]))
        slot_busy[c] = []
        return ds

    def wread(dst, c, ds):
        for ct in range(3):
            for half in range(2):
                r = p.dsr("ds_read_b64_tr_b16", dst + 4 * (3 * c + ct) + 2 * half, 2, WT[half], off=c * 3072 + ct * 32,
                          waits=ds)
                slot_busy[c].append(r)

    xdma = {}

    def xpair(pr, deps=()):
        ds = []
        for r in (2 * pr, 2 * pr + 1):
            if r in S_XR:
                so = S_XR[r]
            else:
                so = S_XO
                p.salu("s_add_u32", S_XO, S_XB, r * RSTR)
            for j in range(2):
                p.salu("s_add_u32", "m0", S_M0[j], XB + (r & 7) * XROW)
                ds.append(p.dma(XD[j], S_X, so, lat=LAT_X, deps=deps))
        xdma[pr] = ds

    mksrd(S_W, 26, 221184)
    if not ENV("NOPF"):
        p.vld("buffer_load_dword", DUMMY, 1, PFO, S_W, soff=T2, lat=LAT_X).wr = set()
    mksrd(S_X, 24, 19267584)
    wk_d = [wchunk(S_W, 1152, 384, 0, lat=LAT_X)]
    xpair(0)
    mksrd(S_WO, 28, 73728)
    mksrd(S_RPB, 30, 1352)
    if not ENV("NOPF"):
        p.vld("buffer_load_dword", DUMMY, 1, PFO, S_WO, soff=T3, lat=LAT_X).wr = set()
    p.salu("s_mul_i32", T0, S_WAVE, 338)
    p.valu("v_lshlrev_b32", PQ[1] + 3, C(1), LANE)
    for i in range(3):
        p.vld("buffer_load_ushort", PQ[1] + i, 1, PQ[1] + 3, S_RPB, soff=T0, off=128 * i, lat=LAT_X)
    wk_d += [wchunk(S_W, 1152, 384, c, lat=LAT_X if c < 2 else LAT_W) for c in range(1, 6)]
    xpair(1)
    p.pri = -1
    xpair(2)
    xpair(3)

    p.pri = -2
    mksrd(S_OUT, 32, 19267584)
    p.valu("v_lshrrev_b32", G, C(4), LANE)
    p.valu("v_and_b32", C8, C(7), LANE)
    p.valu("v_bfe_u32", RB, LANE, C(3), C(1))
    t0, t1, t2, t3, t4, t5 = TB[:6]
    U0, U1, U2, U3 = "s24", "s25", "s26", "s27"
    p.valu("v_bfe_u32", t0, LANE, C(2), C(2))
    p.valu("v_and_b32", t1, C(3), LANE)
    p.valu("v_and_b32", t2, C(1), G)
    p.valu("v_lshl_add_u32", t3, G, C(3), t0)
    for half in range(2):
        p.valu("v_xor_b32", t4, C(half), t2)
        p.valu("v_lshl_add_u32", t4, t4, C(2), t3)
        p.valu("v_mul_u32_u24", t4, C(96), t4)
        p.valu("v_lshl_add_u32", t4, t1, C(3), t4)
        p.valu("v_add_u32", WT[half], S_WLDS, t4)
    p.valu("v_lshl_add_u32", t3, G, C(2), t0)
    p.valu("v_lshrrev_b32", t4, C(1), G)
    p.valu("v_lshlrev_b32", t4, C(2), t4)
    p.valu("v_xor_b32", t3, t3, t4)
    p.valu("v_mul_u32_u24", t3, C(96), t3)
    p.valu("v_add_u32", t3, S_WLDS, t3)
    p.salu("s_and_b32", U0, S_WAVE, 1)
    p.salu("s_lshl_b32", U1, U0, 5)
    p.salu("s_lshl_b32", U2, U0, 6)
    p.salu("s_sub_u32", U2, 64, U2)
    p.valu("v_lshl_add_u32", t4, t1, C(4), t3)
    p.valu("v_add_u32", WOP, U1, t4)
    p.valu("v_lshl_add_u32", t4, t1, C(3), t3)
    p.valu("v_add_u32", WOC, U2, t4)
    p.valu("v_mul_u32_u24", t0, C(XROW), t0)
    p.valu("v_add_u32", t1, C(16), t1)
    p.valu("v_mul_u32_u24", t1, C(384), t1)
    p.valu("v_and_b32", t2, C(2), LANE)
    p.valu("v_xor_b32", t2, t2, G)
    p.valu("v_lshlrev_b32", t2, C(4), t2)
    p.valu("v_add3_u32", XC, t0, t1, t2)
    p.valu("v_mul_u32_u24", t3, C(XROW), RB)
    for dst, co in ((XA, 0), (XQ, 3)):
        p.valu("v_add_u32", t0, C(co), C8)
        p.valu("v_and_b32", t1, C(2), t0)
        p.valu("v_xor_b32", t1, t1, G)
        p.valu("v_mul_u32_u24", t0, C(384), t0)
        p.valu("v_lshl_add_u32", t0, t1, C(4), t0)
        p.valu("v_add_u32", dst, t0, t3)
    p.valu("v_xor_b32", t1, C(1), RB)
    p.valu("v_mul_u32_u24", t1, C(7 * XROW), t1)
    p.valu("v_add_u32", XQW, t0, t1)

    p.pri = 2
    p.tag = "set"
    p.valu("v_mul_u32_u24", t3, C(RSTR), RB)
    p.valu("v_mul_u32_u24", t4, C(768), C8)
    p.valu("v_add3_u32", t3, t3, t4, S_WCOL)
    p.valu("v_lshl_add_u32", t4, G, C(4), t3)
    p.valu("v_add_u32", STL4, U1, t4)
    p.valu("v_lshl_add_u32", t4, G, C(3), t3)
    p.valu("v_add_u32", STL2, U2, t4)
    p.valu("v_bfrev_b32", t4, C(1))
    p.cmp("v_cmp_lt_u32", C(5), C8)
    p.cndmask(STR4, STL4, t4)
    p.cndmask(STR2, STL2, t4)
    p.salu("s_mul_i32", U3, S_TW, 14 * 768)
    p.salu("s_add_u32", S_OB, S_OB, U3)
    p.salu("s_lshr_b32", U1, S_WAVE, 1)
    p.salu("s_mul_i32", U1, U1, 3072)
    p.salu("s_add_u32", U1, U1, OB)
    p.salu("s_lshl_b32", U2, U0, 11)
    p.salu("s_add_u32", U2, U2, U1)
    p.valu("v_lshl_add_u32", OW4, LANE, C(4), U2)
    p.salu("s_lshl_b32", U2, U0, 3)
    p.salu("s_add_u32", U2, U2, U1)
    p.salu("s_add_u32", U2, U2, 1024)
    p.valu("v_lshl_add_u32", OW2, LANE, C(4), U2)
    p.valu("v_lshlrev_b32", ORD, C(4), LANE)
    p.valu("v_add_u32", ORD, C(OB), ORD)
    p.salu("s_mov_b32", S_C, f32bits((48 ** -0.5) * math.log2(math.e)))
    p.salu("s_mov_b32", S_320, EROW)
    p.sel(S_TH, 7, [(S_XR[17], 16, 17), (S_XR[18], 10, 18), (S_XR[19], 11, 19)])
    for r in range(17, 20):
        p.salu("s_mul_i32", S_XR[r], S_XR[r], RSTR)
        p.salu("s_add_u32", S_XR[r], S_XR[r], S_XB)

    EV = SQ[0]
    EM = PQ[0]
    Z0, Z1, Z2, Z3, Z4, Z5 = "s28", "s29", "s30", "s31", "s32", "s33"
    p.sel(S_TH, 0, [(Z0, 2, -8)])
    p.sel(S_TW, 0, [(Z1, 3, 0), (Z2, -3, -2)])
    p.salu("s_lshl_b32", Z3, S_WAVE, 10)
    p.salu("s_add_u32", Z3, Z3, OB + 64)
    t0, t1, t2, t3, t4, t5 = TC[:6]
    for it in range(4):
        p.valu("v_add_u32", t0, C(64 * it), LANE)
        if it == 3:
            p.valu("v_min_u32", t0, C(219), t0)
        p.valu("v_mul_u32_u24", t1, C(3277), t0)
        p.valu("v_lshrrev_b32", t1, C(16), t1)
        p.valu("v_mul_u32_u24", t2, C(20), t1)
        p.valu("v_sub_u32", t0, t0, t2)
        p.valu("v_add_u32", t2, C(-11), t0)
        p.valu("v_max_i32", t2, C(0), t2)
        p.valu("v_mul_u32_u24", t3, C(11), t2)
        p.valu("v_lshrrev_b32", t3, C(5), t3)
        p.valu("v_mul_u32_u24", t4, C(3), t3)
        p.valu("v_sub_u32", t2, t2, t4)
        p.valu("v_lshlrev_b32", t2, C(2), t2)
        p.valu("v_sub_u32", t3, t2, t3)
        p.cmp("v_cmp_lt_u32", C(10), t0)
        p.valu("v_add_u32", t3, Z1, t3)
        p.valu("v_add_u32", t2, Z2, t2)
        p.valu("v_add_u32", t4, C(-3), t0)
        p.cndmask(t0, t0, t3)
        p.cndmask(EM + it, t4, t2)
        p.cmp("v_cmp_lt_u32", C(6), t1)
        p.valu("v_add_u32", t2, C(3), t1)
        p.valu("v_add_u32", t3, Z0, t1)
        p.cndmask(t2, t2, t3)
        p.cmp("v_cmp_eq_u32", C(7), t1)
        p.valu("v_mov_b32", t3, C(32))
        p.valu("v_mul_i32_i24", t2, C(13), t2)
        p.cndmask(EM + it, EM + it, t3)
        p.valu("v_add_u32", t0, t0, t2)
        p.valu("v_lshl_add_u32", SQ[4] + it, t0, C(2), Z3)

    t0, t1, t2, t3, t4, t5 = TD
    p.salu("s_mul_i32", Z4, S_WAVE, EHEAD)
    p.salu("s_add_u32", Z4, Z4, EB)
    p.sel(S_TW, 7, [(Z5, 3, 0)])
    p.valu("v_and_b32", t5, C(1), G)
    for dst, side, gadd in ((ELA, "L", 0), (ELB, "L", 2), (ERB, "R", 0), (ERC, "R", None)):
        if side == "L":
            p.valu("v_mov_b32", t0, C8)
        else:
            p.valu("v_min_u32", t0, C(5), C8)
        if gadd is None:
            p.valu("v_mov_b32", t1, C(2))
        else:
            p.valu("v_add_u32", t1, C(gadd), t5)
        p.cmp("v_cmp_eq_u32", C(3), t1)
        p.valu("v_lshlrev_b32", t2, C(2), t1)
        p.valu("v_sub_u32", t2, t2, t0)
        p.valu("v_add_u32", t2, C(3), t2)
        p.valu("v_min_u32", t2, C(10), t2)
        if side == "R":
            p.valu("v_add_u32", t0, C(-3), t0)
        p.valu("v_mul_u32_u24", t3, C(3), t0)
        p.valu("v_add3_u32", t3, t3, t1, C(11))
        p.valu("v_mov_b32", t4, C(10))
        p.cndmask(t3, t3, t4)
        p.cmp("v_cmp_gt_u32", Z1 if side == "L" else Z5, t0)
        p.cndmask(t2, t2, t3)
        p.valu("v_lshl_add_u32", dst, t2, C(4), Z4)
    p.valu("v_lshrrev_b32", t0, C(1), G)
    p.valu("v_lshl_add_u32", t0, RB, C(1), t0)
    p.valu("v_lshlrev_b32", SH2, C(2), t0)
    p.valu("v_lshl_add_u32", t0, RB, C(2), G)
    p.valu("v_lshlrev_b32", SHC, C(2), t0)
    p.valu("v_mov_b32", t0, C(0x3F803F80))
    for i in range(4):
        p.valu("v_accvgpr_write_b32", ONES + i, t0)
    codes = {}
    code_reg = {}

    def code(br, kind, n):
        k = "C" if kind == "C" else "P"
        key = tuple(code_of(thc, br, k, n) for thc in range(3))
        if key not in codes:
            sreg = f"s{S_CODE0 + len(codes)}"
            assert S_CODE0 + len(codes) < 86
            codes[key] = sreg
        return codes[key]

    for br in range(7):
        for side in "LR":
            for grp in block_groups(side, br):
                for t in grp:
                    code_reg[(br, t)] = code(br, t[0], t[1])
    for key, sreg in codes.items():
        p.salu("s_mov_b32", sreg, key[1])
    for thc, thv in ((0, 0), (2, 7)):
        p.sel(S_TH, thv, [(sreg, key[thc], None) for key, sreg in codes.items() if key[thc] != key[1]])
    ewr = []

    def ebuild():
        t0, t1, t2, t3, t4, t5 = TC[:6]
        p.salu("s_mov_b32", Z0, f32bits(math.sqrt(48.0)))
        p.valu("v_mov_b32", t5, C(NEG))
        p.valu("v_lshl_add_u32", t4, LANE, C(2), Z3)
        ws = []
        for i in range(3):
            v = PQ[1] + i
            p.valu("v_lshlrev_b32", v, C(16), v)
            p.valu("v_mul_f32", v, Z0, v)
            ws.append(p.dsw("ds_write_b32", t4, v, 1, off=256 * i))
        for it in range(4):
            for h in range(2):
                rd = p.dsr("ds_read2_b32", EV + 4 * it + 2 * h, 2, SQ[4] + it, deps=ws)
                rd.text += f" offset0:{2 * h} offset1:{2 * h + 1}"
        for it in range(4):
            for r in range(4):
                v = EV + 4 * it + r
                p.valu("v_add_u32", t0 + (r & 1) * 3, C(r), EM + it)
                p.cmp("v_cmp_gt_u32", C(7), t0 + (r & 1) * 3, dst=("vcc", "s[24:25]")[r & 1])
                p.cndmask(v, t5, v, mask=("vcc", "s[24:25]")[r & 1])
            p.valu("v_add_u32", t1, C(64 * it), LANE)
            if it == 3:
                p.valu("v_min_u32", t1, C(219), t1)
            p.valu("v_lshl_add_u32", t2, t1, C(4), Z4)
            ewr.append(p.dsw("ds_write_b128", t2, EV + 4 * it, 4))

    xbar = {}
    xuse = {}

    def xread(kind, n, ks):
        f = ring.get()
        if kind in "AB":
            addr, off, pairs = XA, ((2 * n) & 7) * XROW + (3072 if kind == "B" else 0), [n]
        elif kind == "C":
            addr, off, pairs = XC, ((4 * n) & 7) * XROW, [2 * n, 2 * n + 1]
        else:
            r = 2 * n + 3
            pairs = [n + 1, n + 2]
            addr, off = (XQW, 0) if (r & 7) == 7 else (XQ, (r & 7) * XROW)
            off += 3072 if kind == "R" else 0
        p.dsr("ds_read_b128", f, 4, addr, off=XB + off + 64 * ks, deps=[xbar[q] for q in pairs])
        return f, pairs

    def proj(what, t):
        p.tag = f"{what}_{t[0]}{t[1]}"
        accs = {(w, c): accp.get() for w in what for c in range(3)}
        last = None
        for ks in range(6):
            p.pri = 0
            f, pairs = xread(t[0], t[1], ks)
            p.pri = 1
            for w in what:
                for c in range(3):
                    a = accs[(w, c)]
                    wf = {"K": WK, "V": WV, "Q": WQ}[w] + 4 * (3 * ks + c)
                    if w == "V":
                        last = p.mfma(a, f, wf, a if ks else None)
                    else:
                        last = p.mfma(a, wf, f, a if ks else None)
        for q in pairs:
            xuse.setdefault(q, []).append(last)
        p.pri = 0
        for w in what:
            for c in range(3):
                a = accs[(w, c)]
                if w == "K":
                    d = kreg(t) + 2 * c
                elif w == "V":
                    d = vreg(t, c)
                else:
                    d = Q0 + (6 if t[0] == "R" else 0) + 2 * c
                p.valu("v_cvt_pk_bf16_f32", d, a, a + 1)
                p.valu("v_cvt_pk_bf16_f32", d + 1, a + 2, a + 3)
        return last

    squad = {}

    def s_part(side, s):
        p.tag = f"S_{side}{s}"
        q = Q0 + (6 if side == "R" else 0)
        tiles = [t for grp in block_groups(side, s) for t in grp]
        idxreg = {}
        for t in tiles:
            sq = sp.get()
            squad[(side, s, t)] = sq
            p.pri = 0
            base = {("L", "A"): ELA, ("L", "B"): ELB, ("R", "B"): ERB, ("R", "C"): ERC}[(side, t[0])]
            key = (t[0] == "C", t[1])
            if key not in idxreg:
                idxreg = {key: etp.get()}
                p.valu("v_bfe_u32", idxreg[key], code_reg[(s, t)], SHC if t[0] == "C" else SH2, C(4))
                first = side == "L"
            else:
                first = False
            ar = etp.get() if first else idxreg[key]
            p.valu("v_mad_u32_u24", ar, idxreg[key], S_320, base)
            p.dsr("ds_read_b128", sq, 4, ar, waits=ewr)
            p.mfma(sq, kreg(t), q, sq)
            last = p.mfma(sq, kreg(t) + 4, q + 4, sq, k32=False)
        return last

    def xpv(side, s):
        p.tag = f"X_{side}{s}"
        p.pri = 1
        groups = block_groups(side, s)
        tiles = [t for grp in groups for t in grp]
        vals = [squad[(side, s, t)] + r for t in tiles for r in range(4)]
        p.valu("v_max3_f32", M0, vals[0], vals[1], vals[2])
        p.valu("v_max3_f32", M1, vals[3], vals[4], vals[5])
        k = 6
        m = M0
        while k < len(vals):
            p.valu("v_max3_f32", m, m, vals[k], vals[k + 1])
            m = M1 if m == M0 else M0
            k += 2
        p.valu("v_max_f32", M0, M0, M1)
        p.valu("v_mov_b32", M1, M0)
        p.perm(16, M0, M1)
        p.valu("v_max_f32", M0, M0, M1)
        p.valu("v_mov_b32", M1, M0)
        p.perm(32, M0, M1)
        p.valu("v_max_f32", M0, M0, M1)
        p.valu("v_mul_f32", MT, S_C, M0)
        last = None
        for gi, grp in enumerate(groups):
            pq = pp.get()
            p.pri = 1
            p.tag = f"X_{side}{s}"
            for j, t in enumerate(grp):
                sq = squad[(side, s, t)]
                for r in range(4):
                    p.valu("v_fma_f32", sq + r, sq + r, S_C, ("neg", MT))
                for r in range(4):
                    p.trans("v_exp_f32", sq + r, sq + r)
                p.valu("v_cvt_pk_bf16_f32", pq + 2 * j, sq, sq + 1)
                p.valu("v_cvt_pk_bf16_f32", pq + 2 * j + 1, sq + 2, sq + 3)
            p.pri = 0
            p.tag = f"PV_{side}{s}"
            k32 = len(grp) == 2
            last = p.mfma(OQ + 12, ONES, pq, OQ + 12 if gi else None, k32=k32)
            for td in range(3):
                last = p.mfma(OQ + 4 * td, vreg(grp[0], td), pq, OQ + 4 * td if gi else None, k32=k32)
        return last

    owr = {}

    def epi(side, s, deps):
        p.tag = f"E_{side}{s}"
        p.pri = 0
        p.trans("v_rcp_f32", OQ + 13, OQ + 12)
        for i in range(6):
            p.valu("v_mul_f32", OQ + 2 * i, OQ + 2 * i, OQ + 13)
            p.valu("v_mul_f32", OQ + 2 * i + 1, OQ + 2 * i + 1, OQ + 13)
            p.valu("v_cvt_pk_bf16_f32", OQ + i, OQ + 2 * i, OQ + 2 * i + 1)
        off = 6144 if side == "R" else 0
        owr[(side, s)] = [p.dsw("ds_write_b128", OW4, OQ, 4, off=off, deps=deps),
                          p.dsw("ds_write_b64", OW2, OQ + 4, 2, off=off, deps=deps)]

    wo_d = []

    def outproj(s, bar):
        p.tag = f"OUT{s}"
        accs = [[accp.get() for m in range(3)] for b in range(2)]
        last = None
        for u in range(6):
            j, r = divmod(u, 3)
            b16 = [(6 * j, 6 * j + 1), (6 * j + 2, 6 * j + 5), (6 * j + 3, 6 * j + 4)][r]
            p.pri = 0
            of = []
            for b in range(2):
                f = ring.get()
                p.dsr("ds_read_b128", f, 4, ORD, off=6144 * b + 1024 * u, deps=[bar])
                of.append(f)
            for m in range(3):
                p.pri = 0
                wf = ring.get()
                for h in range(2):
                    p.dsr("ds_read_b64_tr_b16", wf + 2 * h, 2, WOC if m == 2 else WOP,
                          off=b16[h] * 1536 + (8 if m == 1 else 0), waits=wo_d)
                p.pri = 1
                for b in range(2):
                    a = accs[b][m]
                    last = p.mfma(a, wf, of[b], a if u else None)
        p.pri = 0
        STFLAGS = ENV("STLAST", " sc0 sc1") if s >= int(ENV("STFROM", 6)) else ENV("STFLAGS", " sc0 sc1")
        for b in range(2):
            a0, a1, a2 = accs[b]
            p.salu("s_add_u32", S_SO[b], S_OB, 2 * s * RSTR + b * 8 * 768)
            p.valu("v_cvt_pk_bf16_f32", a0, a0, a0 + 1)
            p.valu("v_cvt_pk_bf16_f32", a0 + 1, a0 + 2, a0 + 3)
            p.valu("v_cvt_pk_bf16_f32", a0 + 2, a1, a1 + 1)
            p.valu("v_cvt_pk_bf16_f32", a0 + 3, a1 + 2, a1 + 3)
            p.vst("buffer_store_dwordx4", a0, 4, STR4 if b else STL4, S_OUT, S_SO[b], flags=STFLAGS)
            p.valu("v_cvt_pk_bf16_f32", a2, a2, a2 + 1)
            p.valu("v_cvt_pk_bf16_f32", a2 + 1, a2 + 2, a2 + 3)
            p.vst("buffer_store_dwordx2", a2, 2, STR2 if b else STL2, S_OUT, S_SO[b], flags=STFLAGS)
        return last

    p.tag = "wu"
    p.pri = 0
    wv_d, wq_d = [], []
    for c in range(6):
        wread(WK, c, wk_d[c])
    for c in range(6):
        wv_d.append(wchunk(S_W, 1152, 768, c))
    p.pri = 2
    ebuild()
    p.pri = 0
    xbar[0] = p.bar(waits=xdma[0])
    l = proj("K", ("A", 0))
    stamp("K_A0", [l])
    proj("K", ("B", 0))
    xbar[1] = p.bar(waits=xdma[1])
    proj("K", ("A", 1))
    proj("K", ("B", 1))
    proj("K", ("C", 0))
    xbar[2] = p.bar(waits=xdma[2])
    proj("K", ("A", 2))
    proj("K", ("B", 2))
    xbar[3] = p.bar(waits=xdma[3])
    p.tag = "wu"
    for c in range(6):
        wread(WV, c, wv_d[c])
        wq_d.append(wchunk(S_W, 1152, 0, c))
    proj("K", ("A", 3))
    proj("K", ("B", 3))
    l = proj("K", ("C", 1))
    stamp("K done", [l])
    for t in (("A", 0), ("B", 0), ("A", 1), ("B", 1), ("C", 0)):
        proj("V", t)
    p.tag = "wu"
    wdma_offsets(384, TE)
    for c in range(6):
        wread(WQ, c, wq_d[c])
        wo_d += wchunk(S_WO, 384, 0, c)
    proj("Q", ("L", 0))
    l = s_part("L", 0)
    stamp("S_L0", [l])

    for s in range(7):
        proj("Q", ("R", s))
        if s == 0:
            p.pri = 0
            b1 = p.bar(deps=xuse[0] + xuse[1])
            xpair(4, deps=[b1])
            xpair(5, deps=[b1])
            for t in (("A", 2), ("B", 2), ("A", 3), ("B", 3)):
                proj("V", t)
            proj("Q", ("L", 1))
            proj("V", ("C", 1))
            lo = None
        else:
            if s < 6:
                proj("Q", ("L", s + 1))
            p.pri = 0
            p.tag = f"B1_{s}"
            b1 = p.bar(deps=xuse.get(s + 1, []) if s + 5 < 10 else [],
                       waits=owr[("L", s - 1)] + owr[("R", s - 1)] + xdma.get(s + 4, []))
            stamp(f"B1_{s}", [b1])
            if s + 4 < 10:
                xbar[s + 4] = b1
            if s + 5 < 10:
                xpair(s + 5, deps=[b1])
            if s & 1:
                proj("KV", ("C", (s + 3) // 2))
            lo = outproj(s - 1, b1)
        xpv("L", s)
        s_part("R", s)
        p.pri = 0
        p.tag = f"B2_{s}"
        if s == 0:
            b2 = p.bar(waits=xdma[4])
            xbar[4] = b2
        else:
            b2 = p.bar(deps=[lo])
        epi("L", s, [b2])
        xpv("R", s)
        if s < 6:
            proj("KV", ("A", s + 4))
            proj("KV", ("B", s + 4))
            s_part("L", s + 1)
        epi("R", s, [b2])
    p.pri = 0
    b1 = p.bar(waits=owr[("L", 6)] + owr[("R", 6)])
    stamp("B1_7", [b1])
    outproj(6, b1)

    p.schedule(dma_gap=int(ENV("DMAGAP", 80)), max_vm=int(ENV("MAXVM", 14)))
    body = p.emit(annotate=bool(ENV("ANN")))
    if ENV("NOBAR"):
        body = body.replace("s_barrier", "s_nop 0")
    if ENV("NOST"):
        body = "\n".join(l if "buffer_store" not in l else "    s_nop 0" for l in body.split("\n"))
    if ENV("NOLGKM"):
        import re
        k = body.index("v_mfma")
        body = body[:k] + re.sub(r"s_waitcnt lgkmcnt\((\d+)\)\n(?!    s_mov_b32 s\d+, s100)", "s_nop 0\n", body[k:])
    cnt = {}
    slots = 0
    for i in p.order:
        cnt[i.kind] = cnt.get(i.kind, 0) + 1
        if i.kind not in ("mfma", "salu", "bar", "nop"):
            slots += i.slots
    sys.stderr.write(f"counts {cnt} vec-slots {slots} model-cycles {p.total} {p.stats} {p.estats} codes {len(codes)}\n")
    if ENV("TL"):
        seen = {}
        for i in p.order:
            if i.kind != "nop":
                seen.setdefault(i.tag, [i.t, i.t])[1] = i.t
        for k, v in seen.items():
            sys.stderr.write(f"{k:10s} {v[0]:6d} {v[1]:6d}\n")

    tailc = ""
    if PROF:
        k = len(stamps)
        stamps.append("end")
        stamps.append("rt10ns")
        k += 1
        body = "    s_memrealtime s[100:101]\n    s_waitcnt lgkmcnt(0)\n    s_mov_b32 s99, s100\n" + body
        tailc = f"""    s_waitcnt vmcnt(0)
    s_memtime s[100:101]
    s_memrealtime s[10:11]
    s_load_dwordx2 s[8:9], s[0:1], 48
    s_waitcnt lgkmcnt(0)
    s_mov_b32 s{STAMPS[k - 1]}, s100
    s_sub_u32 s10, s10, s99
    s_add_u32 s{STAMPS[k]}, s10, s3
    s_mov_b32 s4, s8
    s_and_b32 s5, s9, 0xffff
    s_mov_b32 s6, 0x1000000
    s_mov_b32 s7, 0x20000
    s_lshl_b32 s10, s2, 2
    s_add_u32 s10, s10, {S_WAVE}
    s_lshl_b32 s10, s10, 6
    v_mov_b32 v0, s10
"""
        for j in range(k + 1):
            tailc += f"    v_mov_b32 v1, s{STAMPS[j]}\n    buffer_store_dword v1, v0, s[4:7], 0 offen offset:{4 * j}\n"
    head = f"""; Fused DiNAT neighborhood attention (QKV proj + 7x7 dilated NA + out proj), one 14x14 query tile per workgroup,
{('; stamps=' + ','.join(stamps)) if PROF else ';'}
; @launch grid=(256,1,1) block=(256,1,1) lds={LDS_TOTAL}
.amdgcn_target "amdgcn-amd-amdhsa--gfx950"
.text
.globl {NAME}_kernel
.p2align 8
.type {NAME}_kernel,@function
{NAME}_kernel:
    s_cmp_ge_u32 s2, 256
    s_cbranch_scc0 L_go
    s_endpgm
L_go:
"""
    tail = f"""    s_endpgm
L_end:
.section .rodata,"a"
.p2align 6
.amdhsa_kernel {NAME}_kernel
  .amdhsa_next_free_vgpr 512
  .amdhsa_next_free_sgpr 102
  .amdhsa_accum_offset 256
  .amdhsa_group_segment_fixed_size 0
  .amdhsa_kernarg_size 56
  .amdhsa_user_sgpr_count 2
  .amdhsa_user_sgpr_kernarg_segment_ptr 1
  .amdhsa_system_sgpr_workgroup_id_x 1
.end_amdhsa_kernel
"""
    return head + body + tailc + tail


if __name__ == "__main__":
    out = sys.argv[1] if len(sys.argv) > 1 else f"/code/{NAME}.s"
    open(out, "w").write(gen())
```
